```python
import torch

def _softmax(x, axis=-1):
    return torch.softmax(x, dim=axis)
def _gelu(x):
    return torch.nn.functional.gelu(x, approximate="tanh")
def _silu(x):
    return torch.nn.functional.silu(x)
def _sigmoid(x):
    return torch.sigmoid(x)
def _layernorm(x, axis=-1, eps=1e-5):
    m = x.mean(dim=axis, keepdim=True)
    v = x.var(dim=axis, keepdim=True, unbiased=False)
    return (x - m) / torch.sqrt(v + eps)
def _scatter_add(tgt, idx, src, axis=0):
    return tgt.clone().index_add_(axis, idx, src)
def _segment_sum(src, seg, n):
    out = torch.zeros((n,) + src.shape[1:], dtype=src.dtype)
    return out.index_add_(0, seg, src)
def _pad(x, pw):
    flat = tuple(v for pair in reversed(pw) for v in pair)
    return torch.nn.functional.pad(x, flat)

kernel_name = 'sequential_preLN__spectral_gfnet__dense_activation_silu__prompt'

def setup_inputs():

    _w = (lambda a: (lambda t: t.to(torch.bfloat16) if t.is_floating_point() else t)(torch.as_tensor(a)))
    def _A_setup():
        B, S, D = 1, 2048, 640
        Df = D // 2 + 1
        return {
            "x": _w((lambda *s: torch.randn(*s, dtype=torch.bfloat16) * 0.05)(B, S, D)),
            "w_r": _w((lambda *s: torch.randn(*s, dtype=torch.bfloat16) * 0.4)(S, Df) * 0.02),
            "w_i": _w((lambda *s: torch.randn(*s, dtype=torch.bfloat16) * 0.4)(S, Df) * 0.02),
        }
    _A_in = _A_setup()

    def _B_setup():
        B, S, D, F = 1, 2048, 640, 1728
        return {
            "x": _w((lambda *s: torch.randn(*s, dtype=torch.bfloat16) * 0.05)(B, S, D)),
            "w1": _w((lambda *s: torch.randn(*s, dtype=torch.bfloat16) * 0.8)(D, F) * (D ** -0.5)),
            "w2": _w((lambda *s: torch.randn(*s, dtype=torch.bfloat16) * 0.1)(F, D) * (F ** -0.5)),
        }
    _B_in = _B_setup()

    return {
        "A_x": _A_in["x"],
        "A_w_r": _A_in["w_r"],
        "A_w_i": _A_in["w_i"],
        "B_x": _B_in["x"],
        "B_w1": _B_in["w1"],
        "B_w2": _B_in["w2"],
    }

def reference(A_x, A_w_r, A_w_i, B_x, B_w1, B_w2):
    def _A_ref(x, w_r, w_i):
        B, S, D = x.shape
        X = (lambda x, axes=(-2,-1): torch.fft.rfft2(x.float(), dim=axes))(x, axes=(-2, -1))
        W = w_r + 1j * w_i
        X = X * W
        y = (lambda x, s, axes=(-2,-1): torch.fft.irfft2(x, s=s, dim=axes).to(torch.bfloat16))(X, (S, D), axes=(-2, -1))
        return y

    def _B_ref(x, w1, w2):
        h = torch.einsum("bsd,df->bsf", x, w1)
        h = _silu(h)
        out = torch.einsum("bsf,fd->bsd", h, w2)
        return out

    x = A_x
    h = x + _A_ref(_layernorm(x, axis=-1), A_w_r, A_w_i)
    h2 = h + _B_ref(_layernorm(h, axis=-1), B_w1, B_w2)
    return h2
```

```python
import re, struct

def f2u(x):
    return struct.unpack("<I", struct.pack("<f", x))[0]
def fl(x):
    return "0x%08x" % f2u(x)

_REG = re.compile(r"^-?\|?(?:abs\()?([vas])(?:(\d+)|\[(\d+):(\d+)\])\)?\|?$")
def regs_of(op):
    op = op.strip()
    if op == "vcc": return {("s", 106), ("s", 107)}
    if op == "exec": return {("s", 126), ("s", 127)}
    if op == "m0": return {("s", 124)}
    m = _REG.match(op)
    if not m: return set()
    k = m.group(1)
    if m.group(2) is not None:
        return {(k, int(m.group(2)))}
    return {(k, i) for i in range(int(m.group(3)), int(m.group(4)) + 1)}

TRANS = ("v_exp_f32", "v_log_f32", "v_rcp_f32", "v_rsq_f32", "v_sqrt_f32", "v_sin_f32", "v_cos_f32")

class Ins:
    def __init__(self, text):
        self.text = text
        t = text.split(";")[0].strip()
        parts = t.split(None, 1)
        self.mn = parts[0]
        rest = parts[1] if len(parts) > 1 else ""
        ops, depth, cur = [], 0, ""
        for ch in rest:
            if ch == "[": depth += 1
            if ch == "]": depth -= 1
            if ch == "," and depth == 0:
                ops.append(cur.strip()); cur = ""
            else:
                cur += ch
        if cur.strip(): ops.append(cur.strip())
        self.mods = ""
        if ops:
            last = ops[-1].split(None, 1)
            if len(last) > 1:
                ops[-1] = last[0]; self.mods = last[1]
        self.ops = ops
        mn = self.mn
        R = [regs_of(o) for o in ops]
        U = lambda l: set().union(*l) if l else set()
        self.w = set(); self.r = set()
        self.mfma = mn.startswith("v_mfma")
        self.valu = mn.startswith("v_") and not self.mfma
        self.salu = mn.startswith("s_")
        self.vmem = mn.startswith("buffer_") or mn.startswith("global_")
        self.ds = mn.startswith("ds_")
        self.trans = mn in TRANS
        self.dot = mn.startswith("v_dot")
        self.dpp = ("quad_perm" in self.mods or "row_" in self.mods or "wave_" in self.mods)
        self.perml = mn.startswith("v_permlane")
        self.rlane = mn.startswith("v_readfirstlane") or mn.startswith("v_readlane")
        self.ldsdma = self.vmem and (re.search(r"\blds\b", self.mods) is not None or "load_lds" in mn)
        self.widest = False
        self.states = 1
        if mn == "s_nop":
            self.states = int(ops[0], 0) + 1
        if self.mfma:
            self.w = R[0]; self.A = R[1]; self.B = R[2]; self.C = R[3]
            self.r = self.A | self.B | self.C
            self.passes = 8 if "32x32x16" in mn else 4
            assert "32x32x16" in mn or "16x16x32" in mn
        elif self.valu:
            self.w = set(R[0]); self.r = U(R[1:])
            if self.perml:
                self.w = R[0] | R[1]; self.r = R[0] | R[1]
            if mn.startswith(("v_fmac", "v_dot2c", "v_pk_fmac", "v_writelane")) or self.dpp:
                self.r |= R[0]
            if mn.startswith(("v_add_co", "v_sub_co", "v_addc_co", "v_subb_co")):
                self.w |= R[1]; self.r = U(R[2:])
            if self.dot and len(R) == 4:
                self.AB = R[1] | R[2]
            elif self.dot:
                self.AB = R[1] | R[2]
        elif self.ds:
            if mn.startswith("ds_read") or mn.startswith("ds_bpermute") or mn.startswith("ds_swizzle"):
                self.w = R[0]; self.r = U(R[1:])
            else:
                self.r = U(R)
        elif self.vmem:
            if mn in ("buffer_wbl2", "buffer_inv"):
                pass
            elif self.ldsdma:
                self.r = U(R) | {("s", 124)}
            elif "_load" in mn:
                self.w = R[0]; self.r = U(R[1:])
                if "d16" in mn: self.r |= R[0]
            else:
                self.r = U(R)
                if mn.startswith("buffer_"): self.data = R[0]
                else: self.data = R[1]
                self.widest = ("x3" in mn or "x4" in mn)
                if "atomic" in mn and re.search(r"\bsc0\b", self.mods): self.w = R[0]
        elif self.salu:
            if mn.startswith(("s_cmp", "s_cbranch", "s_branch", "s_waitcnt", "s_barrier", "s_nop", "s_endpgm", "s_sleep", "s_setprio", "s_bitcmp")):
                self.r = U(R)
            else:
                self.w = set(R[0]) if R else set(); self.r = U(R[1:])
                if "saveexec" in mn: self.w |= {("s", 126), ("s", 127)}

def need(P, C):
    n = 0
    vw = {x for x in P.w if x[0] != "s"}
    sw = {x for x in P.w if x[0] == "s"}
    if P.valu:
        if C.mfma and vw & C.r: n = max(n, 2)
        if P.trans and C.valu and not C.trans and vw & C.r: n = max(n, 1)
        if P.trans and (C.vmem or C.ds) and vw & C.r: n = max(n, 1)
        if sw:
            if C.vmem and sw & C.r: n = max(n, 5)
            if C.valu and (sw & C.r or (C.mn.startswith("v_cndmask") and ("s", 106) in sw)): n = max(n, 4 if C.rlane else 2)
            if C.salu and sw & C.r: n = max(n, 1)
            if ("s", 126) in sw and (C.mfma or C.rlane or C.perml): n = max(n, 4)
            if ("s", 126) in sw and C.dpp: n = max(n, 5)
        if C.rlane and vw & C.r: n = max(n, 1)
        if (C.perml or C.dpp) and vw & C.r: n = max(n, 2)
        if P.dot and vw:
            if C.dot and C.mn == P.mn:
                if vw & C.AB: n = max(n, 3)
            elif vw & (C.r | C.w): n = max(n, 3)
    if P.mfma:
        big = {4: 8, 8: 12}[P.passes]
        if C.mfma:
            if P.w & (C.A | C.B): n = max(n, big)
            if P.w & C.C:
                if not (P.w == C.C and P.passes == C.passes): n = max(n, {4: 6, 8: 10}[P.passes])
            elif P.w & C.w: n = max(n, big)
        elif P.w & (C.r | C.w): n = max(n, big)
        if C.valu and P.C & C.w: n = max(n, {4: 3, 8: 7}[P.passes])
        if (C.ds or C.vmem) and P.C & C.w: n = max(n, {4: 3, 8: 7}[P.passes])
    if P.salu and ("s", 124) in P.w and C.ldsdma: n = max(n, 1)
    if P.vmem and P.widest and P.data & C.w: n = max(n, 2)
    return n

class Asm:
    def __init__(self, auto_nop=True):
        self.lines = []
        self.launches = []
        self.kds = []
        self.hist = []
        self.auto_nop = auto_nop
        self.nnop = 0
    def raw(self, l):
        self.lines.append(l)
    def __call__(self, s):
        for l in s.split("\n"):
            l = l.strip()
            if not l: continue
            if l.startswith(";"):
                self.lines.append("    " + l); continue
            if l.endswith(":") or l.startswith("."):
                self.lines.append(l); continue
            ins = Ins(l)
            if self.auto_nop:
                dist = 0; req = 0
                for P in reversed(self.hist):
                    req = max(req, need(P, ins) - dist)
                    dist += P.states
                    if dist >= 12: break
                if req > 0:
                    nop = Ins(f"s_nop {req-1}")
                    self.lines.append("    " + nop.text); self.hist.append(nop); self.nnop += 1
            self.lines.append("    " + l)
            self.hist.append(ins)
            if len(self.hist) > 32: self.hist = self.hist[-16:]
    def launch(self, name, grid, block, lds):
        self.launches.append(f"; @launch kernel={name} grid=({grid},1,1) block=({block},1,1) lds={lds}")
    def kernel(self, name, grid, block, lds, vgpr, accum, sgpr=96, launch=True):
        if launch:
            self.launch(name, grid, block, lds)
        self.lines.append(f".globl {name}")
        self.lines.append(".p2align 8")
        self.lines.append(f".type {name},@function")
        self.lines.append(f"{name}:")
        self.kds.append((name, vgpr, accum, sgpr))
        self.hist = []
    def text(self, header=""):
        out = []
        if header:
            out.append(header.rstrip("\n"))
        out += self.launches
        out.append('.amdgcn_target "amdgcn-amd-amdhsa--gfx950"')
        out.append(".text")
        out += self.lines
        out.append('.section .rodata,"a"')
        for name, vgpr, accum, sgpr in self.kds:
            out.append(".p2align 6")
            out.append(f".amdhsa_kernel {name}")
            out.append(f"  .amdhsa_next_free_vgpr {vgpr}")
            out.append(f"  .amdhsa_next_free_sgpr {sgpr}")
            out.append(f"  .amdhsa_accum_offset {accum}")
            out.append("  .amdhsa_group_segment_fixed_size 0")
            out.append("  .amdhsa_kernarg_size 72")
            out.append("  .amdhsa_user_sgpr_count 2")
            out.append("  .amdhsa_user_sgpr_kernarg_segment_ptr 1")
            out.append("  .amdhsa_system_sgpr_workgroup_id_x 1")
            out.append("  .amdhsa_float_denorm_mode_32 3")
            out.append(".end_amdhsa_kernel")
        return "\n".join(out) + "\n"

def V(i, n=1):
    return f"v{i}" if n == 1 else f"v[{i}:{i+n-1}]"
def A(i, n=1):
    return f"a{i}" if n == 1 else f"a[{i}:{i+n-1}]"
def S(i, n=1):
    return f"s{i}" if n == 1 else f"s[{i}:{i+n-1}]"
```

```python
import math
from asmlib import V, A, S, fl
from gen import *

PI16 = [8 * (r >> 2) + (r & 3) for r in range(16)]
M32 = "v_mfma_f32_32x32x16_bf16"
M16 = "v_mfma_f32_16x16x32_bf16"
NEG3 = "neg_lo:[0,0,1] neg_hi:[0,0,1]"
NEG2 = "neg_lo:[0,1] neg_hi:[0,1]"

def k2(a):
    a.kernel("k2_kernel", 256, 256, 0, 256, 256)
    a("""
    s_cmp_ge_u32 s2, 160
    s_cbranch_scc1 K2_helper
    s_load_dwordx2 s[6:7], s[0:1], 64
    v_and_b32 v1, 63, v0
    v_lshrrev_b32 v2, 6, v0
    v_readfirstlane_b32 s20, v2
    v_and_b32 v2, 31, v1                     ; l&31
    v_lshrrev_b32 v3, 5, v1                  ; hh
    s_lshl_b32 s21, s2, 2
    s_add_u32 s21, s21, s20                  ; unit = (k-1)*2 + p
    s_lshl_b32 s22, s21, 12
    v_lshrrev_b32 v4, 2, v2
    v_lshlrev_b32 v4, 7, v4
    v_lshl_add_u32 v4, v3, 10, v4
    v_and_b32 v5, 3, v2
    v_lshl_add_u32 v4, v5, 4, v4
    v_lshlrev_b32 v5, 4, v1
    s_waitcnt lgkmcnt(0)
    """)
    srd(a, 8, 6, Y1, SZ26); srd(a, 12, 6, WT, SZ26)
    UR, UI, WP = 16, 24, 32
    C1, C2, C4 = 48, 72, 96
    T1C, T1S, T2C, T2S = 120, 136, 152, 168
    RE, IM = 184, 200
    TMP = 216
    for j in range(2):
        a(f"buffer_load_dwordx4 {V(UR+4*j,4)}, v4, s[8:11], s22 offen offset:{2048*j}")
        a(f"buffer_load_dwordx4 {V(UI+4*j,4)}, v4, s[8:11], s22 offen offset:{2048*j+64}")
    for g in range(4):
        a(f"buffer_load_dwordx4 {V(WP+4*g,4)}, v5, s[12:15], s22 offen offset:{1024*g}")
    srd(a, 24, 6, Y2, SZ26)
    a(f"""
    s_and_b32 s23, s21, 1                    ; p
    s_lshr_b32 s28, s21, 1
    s_add_u32 s28, s28, 1                    ; k
    v_lshl_add_u32 v6, v2, 1, s23
    v_cvt_f32_u32 v6, v6                     ; 2*lane+p
    v_cvt_f32_u32 v7, v2                     ; lane
    v_cvt_f32_u32 v8, v3                     ; hh
    v_lshl_add_u32 v9, v3, 3, s23
    v_cvt_f32_u32 v9, v9                     ; 8hh+p
    v_cvt_f32_u32 v10, s28                   ; k
    """)
    L, B = 12, 13
    def gset(dc, ds, coefs):
        for i in range(16):
            if coefs[i] == 0:
                a(f"v_cos_f32 v{dc+i}, v{B}\nv_sin_f32 v{ds+i}, v{B}")
            else:
                a(f"v_fmamk_f32 v{ds+i}, v{L}, {fl(float(coefs[i]))}, v{B}")
                a(f"v_cos_f32 v{dc+i}, v{ds+i}\nv_sin_f32 v{ds+i}, v{ds+i}")
    def cset(dst, coefs):
        gset(TMP, TMP + 16, coefs)
        for i in range(8):
            a(f"v_cvt_pk_bf16_f32 v{dst+i}, v{TMP+2*i}, v{TMP+2*i+1}")
            a(f"v_cvt_pk_bf16_f32 v{dst+8+i}, v{TMP+16+2*i}, v{TMP+16+2*i+1}")
            a(f"v_xor_b32 v{dst+16+i}, 0x80008000, v{dst+8+i}")
    a(f"v_mul_f32 v{L}, {fl(1/64)}, v6\nv_mul_f32 v{B}, v{L}, v8\nv_mul_f32 v{B}, {fl(8.0)}, v{B}")
    cset(C1, [16 * (r >> 3) + (r & 7) for r in range(16)])
    a(f"v_mul_f32 v{L}, {fl(1/2048)}, v6\nv_mul_f32 v{B}, v{L}, v8\nv_mul_f32 v{B}, 4.0, v{B}")
    gset(T1C, T1S, PI16)
    a(f"v_mul_f32 v{L}, {fl(1/32)}, v7\nv_mul_f32 v{B}, v{L}, v8\nv_mul_f32 v{B}, 4.0, v{B}")
    cset(C2, PI16)
    a(f"v_mul_f32 v{B}, v7, v9\nv_mul_f32 v{B}, {fl(1/64)}, v{B}")
    cset(C4, PI16)
    a(f"v_mul_f32 v{L}, {fl(1/1024)}, v7\nv_mul_f32 v{B}, {fl(1/32)}, v{B}\nv_fmamk_f32 v{B}, v10, {fl(-1/1280)}, v{B}")
    gset(T2C, T2S, PI16)

    def step(dataA, C, xr, xi, conj):
        sp, sn = (C + 8, C + 16) if not conj else (C + 16, C + 8)
        seq = []
        for j in range(2):
            seq.append((RE, C + 4*j, xr + 4*j)); seq.append((IM, C + 4*j, xi + 4*j))
            seq.append((RE, sp + 4*j, xi + 4*j)); seq.append((IM, sn + 4*j, xr + 4*j))
        seen = set()
        for acc, c, d in seq:
            o1, o2 = (d, c) if dataA else (c, d)
            a(f"{M32} {V(acc,16)}, {V(o1,4)}, {V(o2,4)}, {V(acc,16) if acc in seen else '0'}")
            seen.add(acc)
    def cmul(c, s, conj, dr, di):
        n1 = "" if not conj else " neg_lo:[0,1,0] neg_hi:[0,1,0]"
        n2 = " neg_lo:[0,1,0] neg_hi:[0,1,0]" if not conj else ""
        for i in range(8):
            a(f"v_pk_mul_f32 {V(TMP+2*i,2)}, {V(RE+2*i,2)}, {V(c+2*i,2)}")
        for i in range(8):
            a(f"v_pk_mul_f32 {V(TMP+16+2*i,2)}, {V(IM+2*i,2)}, {V(c+2*i,2)}")
        for i in range(8):
            a(f"v_pk_fma_f32 {V(TMP+2*i,2)}, {V(IM+2*i,2)}, {V(s+2*i,2)}, {V(TMP+2*i,2)}{n1}")
            a(f"v_pk_fma_f32 {V(TMP+16+2*i,2)}, {V(RE+2*i,2)}, {V(s+2*i,2)}, {V(TMP+16+2*i,2)}{n2}")
        for i in range(8):
            a(f"v_cvt_pk_bf16_f32 v{dr+i}, v{TMP+2*i}, v{TMP+2*i+1}")
            a(f"v_cvt_pk_bf16_f32 v{di+i}, v{TMP+16+2*i}, v{TMP+16+2*i+1}")
    a("s_waitcnt vmcnt(4)")
    step(True, C1, UR, UI, False)
    cmul(T1C, T1S, False, UR, UI)
    step(False, C2, UR, UI, False)
    a("s_waitcnt vmcnt(0)")
    for i in range(16):
        a(f"v_lshlrev_b32 v{T1C+i}, 16, v{WP+i}")
        a(f"v_and_b32 v{T1S+i}, 0xffff0000, v{WP+i}")
    cmul(T1C, T1S, True, UR, UI)
    step(True, C2, UR, UI, True)
    cmul(T2C, T2S, True, UR, UI)
    step(False, C4, UR, UI, True)
    a("""
    v_mul_u32_u24 v4, 327680, v3
    v_lshl_add_u32 v4, v2, 2, v4
    s_lshl_b32 s22, s21, 8
    """)
    for rp in range(8):
        a(f"s_add_u32 s23, s22, {(4*(rp>>1) + (rp&1)) * 163840}")
        a(f"v_cvt_pk_bf16_f32 v{TMP+2*rp}, v{RE+2*rp}, v{RE+2*rp+1}")
        a(f"v_cvt_pk_bf16_f32 v{TMP+2*rp+1}, v{IM+2*rp}, v{IM+2*rp+1}")
        a(f"buffer_store_dword v{TMP+2*rp}, v4, s[24:27], s23 offen")
        a(f"buffer_store_dword v{TMP+2*rp+1}, v4, s[24:27], s23 offen offset:128")
    a("s_endpgm")
    a("""
    K2_helper:
    s_load_dwordx2 s[6:7], s[0:1], 64
    v_and_b32 v1, 63, v0
    v_lshrrev_b32 v2, 6, v0
    v_readfirstlane_b32 s20, v2
    s_sub_u32 s21, s2, 160
    s_lshl_b32 s21, s21, 2
    s_add_u32 s21, s21, s20
    s_cmp_ge_u32 s21, 108
    s_cbranch_scc1 K2_end
    v_lshlrev_b32 v5, 4, v1
    s_mul_i32 s22, s21, 20480
    s_waitcnt lgkmcnt(0)
    """)
    srd(a, 8, 6, W1P, 108*20480); srd(a, 12, 6, CS, 108*64)
    for ks in range(20):
        a(f"buffer_load_dwordx4 {V(16+4*ks,4)}, v5, s[8:11], s22 offen offset:{1024*(ks&3)}")
        if ks & 3 == 3: a("s_add_u32 s22, s22, 4096")
    for i in range(4): a(f"v_mov_b32 v{8+i}, 0x3f803f80")
    a("v_lshrrev_b32 v6, 4, v1\nv_lshlrev_b32 v6, 4, v6\ns_lshl_b32 s22, s21, 6\ns_waitcnt vmcnt(0)")
    for ks in range(20):
        a(f"{M16} v[12:15], {V(16+4*ks,4)}, v[8:11], {'0' if ks == 0 else 'v[12:15]'}")
    a("buffer_store_dwordx4 v[12:15], v6, s[12:15], s22 offen")
    a("K2_end:\ns_endpgm")

def decode345(a, lbl):
    a(f"""
    s_cmp_ge_u32 s2, 256
    s_cbranch_scc1 {lbl}
    s_load_dwordx2 s[4:5], s[0:1], 0
    s_load_dwordx2 s[6:7], s[0:1], 64
    s_load_dwordx2 s[16:17], s[0:1], 48
    v_and_b32 v1, 63, v0
    v_lshrrev_b32 v2, 6, v0
    v_readfirstlane_b32 s20, v2              ; w
    s_and_b32 s21, s2, 7
    s_lshl_b32 s21, s21, 1
    s_lshr_b32 s22, s2, 7
    s_add_u32 s21, s21, s22                  ; ap
    s_bfe_u32 s22, s2, 0x40003               ; j
    v_and_b32 v2, 15, v1                     ; l&15
    v_lshrrev_b32 v3, 4, v1                  ; l>>4
    v_lshlrev_b32 v4, 4, v1                  ; lane*16
    """)

def phase3(a, sc):
    a("""
    s_and_b32 s23, s22, 1                    ; bh
    s_lshr_b32 s28, s22, 1                   ; cg
    s_mul_i32 s29, s21, 163840
    s_and_b32 s30, s20, 1                    ; kodd
    s_xor_b32 s31, s30, 1
    s_lshl_b32 s31, s31, 9
    s_add_u32 s29, s29, s31
    s_lshr_b32 s31, s20, 1                   ; reim
    s_lshl_b32 s44, s31, 7
    s_add_u32 s29, s29, s44
    s_lshl_b32 s44, s23, 6
    s_add_u32 s29, s29, s44
    s_mul_i32 s45, s20, 20480
    v_lshrrev_b32 v5, 2, v1
    v_lshlrev_b32 v5, 10, v5
    v_and_b32 v6, 3, v1
    v_lshl_add_u32 v5, v6, 4, v5
    """)
    srd(a, 8, 6, Y2, SZ26)
    for j in range(10):
        for p in range(2):
            a(f"s_add_u32 m0, s45, {(2*j+p)*1024 - 256*p}")
            a(f"buffer_load_dwordx4 v5, s[8:11], s29 offen offset:{256*p} lds")
        if j < 9: a("s_add_u32 s29, s29, 16384")
    srd(a, 12, 4, 0, XB)
    XR = 16
    a(f"""
    s_lshl_b32 s46, s31, 6
    s_lshl_b32 s44, s21, 2
    s_add_u32 s46, s46, s44
    s_lshl_b32 s44, s30, 1
    s_add_u32 s46, s46, s44
    s_add_u32 s46, s46, s23                  ; mt
    s_mul_i32 s47, s46, 20480
    s_lshl_b32 s44, s28, 2
    v_add_u32 v7, s44, v3                    ; c0
    v_sub_u32 v8, 39, v7                     ; 39-c0
    v_mul_u32_u24 v9, 1280, v2
    v_lshl_add_u32 v10, v7, 4, v9
    v_lshl_add_u32 v11, v8, 4, v9
    buffer_load_dwordx4 {V(XR,4)}, v10, s[12:15], s47 offen
    buffer_load_dwordx4 {V(XR+4,4)}, v10, s[12:15], s47 offen offset:640
    buffer_load_dwordx4 {V(XR+8,4)}, v11, s[12:15], s47 offen offset:640
    buffer_load_dwordx4 {V(XR+12,4)}, v11, s[12:15], s47 offen
    v_lshlrev_b32 v9, 4, v2
    v_lshl_add_u32 v10, v7, 8, v9
    v_lshl_add_u32 v11, v8, 8, v9
    """)
    G, T = 32, 72
    L, B, CO = 12, 13, 14
    SC = 2.0 / (2048 * 640)
    a(f"""
    v_and_b32 v5, 31, v1
    s_lshl_b32 s44, s28, 5
    v_add_u32 v5, s44, v5
    v_cvt_f32_u32 v5, v5
    v_add_f32 v5, 0.5, v5
    v_mul_f32 v{L}, {fl(1/640)}, v5
    v_lshrrev_b32 v6, 5, v1                  ; hh
    s_sub_u32 s44, 2, s30
    v_lshl_add_u32 v5, v6, 4, s44
    v_cvt_f32_u32 v5, v5
    v_cvt_f32_u32 v{B}, s31
    v_mul_f32 v{B}, {fl(-0.25)}, v{B}
    v_fmac_f32 v{B}, v5, v{L}
    v_mul_f32 v5, {fl(32.0)}, v{L}
    v_cos_f32 v{CO}, v5
    v_add_f32 v{CO}, v{CO}, v{CO}
    s_xor_b32 s44, s30, 1
    v_and_b32 v5, s44, v6
    v_lshlrev_b32 v5, 23, v5
    v_sub_u32 v15, 1.0, v5
    """)
    for j in range(2):
        for i in range(8):
            d = T + 8*j + i
            a(f"v_fmamk_f32 v{d}, v{L}, {fl(32.0*j+2*i)}, v{B}")
            a(f"v_cos_f32 v{d}, v{d}")
    for i in range(16):
        a(f"v_mul_f32 v{T+i}, {fl(SC)}, v{T+i}")
    def pack(dst, src):
        for i in range(4):
            a(f"v_cvt_pk_bf16_f32 v{dst+i}, v{src+2*i}, v{src+2*i+1}")
    pack(G, T); pack(G + 4, T + 8)
    t0, t1 = T, T + 8
    for j in range(2, 10):
        for i in range(4):
            a(f"v_pk_fma_f32 {V(t0+2*i,2)}, {V(CO,2)}, {V(t1+2*i,2)}, {V(t0+2*i,2)} op_sel_hi:[0,1,1] {NEG3}")
        if j == 9: a(f"v_mul_f32 v{t0+7}, v{t0+7}, v15")
        pack(G + 4*j, t0)
        t0, t1 = t1, t0
    a("""
    v_lshrrev_b32 v5, 2, v2
    v_lshlrev_b32 v5, 6, v5
    v_and_b32 v12, 3, v2
    v_lshl_add_u32 v5, v12, 3, v5
    v_and_b32 v12, 1, v3
    v_lshl_add_u32 v5, v12, 5, v5
    v_lshl_add_u32 v5, v6, 9, v5
    v_add_u32 v5, s45, v5
    """)
    FR = 72; ACC = 104
    NX = 4
    def reads(j):
        a(f"s_waitcnt vmcnt({NX + 2*(9-j)})")
        for p in range(2):
            d = FR + 8*(j % 3) + 4*p
            a(f"ds_read_b64_tr_b16 {V(d,2)}, v5 offset:{(2*j+p)*1024}")
            a(f"ds_read_b64_tr_b16 {V(d+2,2)}, v5 offset:{(2*j+p)*1024+256}")
    reads(0); reads(1)
    for j in range(10):
        if j + 2 < 10:
            reads(j + 2); a("s_waitcnt lgkmcnt(8)")
        else:
            a(f"s_waitcnt lgkmcnt({4 if j == 8 else 0})")
        for p in range(2):
            a(f"{M32} {V(ACC+16*p,16)}, {V(G+4*j,4)}, {V(FR+8*(j%3)+4*p,4)}, {'0' if j == 0 else V(ACC+16*p,16)}")
    a("""
    v_and_b32 v12, 1, v1                     ; am
    v_bfe_u32 v13, v1, 1, 4                  ; b
    v_lshlrev_b32 v14, 2, v12
    v_xor_b32 v13, v13, v14
    v_lshlrev_b32 v13, 4, v13
    v_lshl_add_u32 v13, v12, 8, v13
    v_lshl_add_u32 v13, v6, 9, v13
    v_add_u32 v13, s45, v13
    s_lshl_b32 s44, s30, 2
    v_xor_b32 v14, s44, v2
    v_lshlrev_b32 v14, 4, v14
    v_lshl_add_u32 v14, v3, 10, v14
    s_lshl_b32 s44, s31, 12
    s_lshl_b32 s29, s30, 8
    s_add_u32 s44, s44, s29
    v_add_u32 v14, s44, v14
    """)
    UU = 136
    for i in range(8):
        a(f"v_pk_add_f32 {V(UU+2*i,2)}, {V(ACC+2*i,2)}, {V(ACC+16+2*i,2)}")
        a(f"v_pk_add_f32 {V(UU+16+2*i,2)}, {V(ACC+2*i,2)}, {V(ACC+16+2*i,2)} {NEG2}")
    for h in range(2):
        for g in range(4):
            a(f"ds_write_b128 v13, {V(UU+16*h+4*g,4)} offset:{4096*h + 1024*g}")
    srd(a, 8, 6, HF, SZ26); srd(a, 12, 6, ST, 81920)
    a("s_waitcnt lgkmcnt(0)\ns_barrier")
    Q = 32
    for c in range(4):
        for e in range(2):
            a(f"ds_read_b128 {V(Q+8*c+4*e,4)}, v14 offset:{20480*c + 512*e}")
    XU = 72
    a("s_waitcnt vmcnt(0)")
    for i in range(16):
        a(f"v_lshlrev_b32 v{XU+2*i}, 16, v{XR+i}")
        a(f"v_and_b32 v{XU+2*i+1}, 0xffff0000, v{XR+i}")
    a("s_waitcnt lgkmcnt(0)")
    Aa, Bb, Cc, Dd = 104, 112, 120, 128
    for i in range(4):
        a(f"v_pk_add_f32 {V(Aa+2*i,2)}, {V(Q+2*i,2)}, {V(Q+8+2*i,2)}")
        a(f"v_pk_add_f32 {V(Bb+2*i,2)}, {V(Q+2*i,2)}, {V(Q+8+2*i,2)} {NEG2}")
        a(f"v_pk_add_f32 {V(Cc+2*i,2)}, {V(Q+16+2*i,2)}, {V(Q+24+2*i,2)}")
        a(f"v_pk_add_f32 {V(Dd+2*i,2)}, {V(Q+16+2*i,2)}, {V(Q+24+2*i,2)} {NEG2}")
    for i in range(4):
        a(f"v_pk_add_f32 {V(Q+2*i,2)}, {V(Aa+2*i,2)}, {V(Cc+2*i,2)} {NEG2}")
        a(f"v_pk_add_f32 {V(Q+8+2*i,2)}, {V(Bb+2*i,2)}, {V(Dd+2*i,2)} {NEG2}")
        a(f"v_pk_add_f32 {V(Q+16+2*i,2)}, {V(Aa+2*i,2)}, {V(Cc+2*i,2)}")
        a(f"v_pk_add_f32 {V(Q+24+2*i,2)}, {V(Bb+2*i,2)}, {V(Dd+2*i,2)}")
    a("s_add_u32 s44, s47, 10240\nv_mov_b32 v5, 0\nv_mov_b32 v6, 0\nv_mov_b32 v7, 0x3f803f80")
    for run in range(4):
        for i in range(4):
            if run < 2:
                a(f"v_pk_add_f32 {V(XU+8*run+2*i,2)}, {V(XU+8*run+2*i,2)}, {V(Q+8*run+2*i,2)}")
            else:
                a(f"v_pk_add_f32 {V(XU+8*run+2*i,2)}, {V(XU+8*run+2*i,2)}, {V(Q+8*run+6-2*i,2)} op_sel:[0,1] op_sel_hi:[1,0]")
        for i in range(4):
            a(f"v_cvt_pk_bf16_f32 v{XR+4*run+i}, v{XU+8*run+2*i}, v{XU+8*run+2*i+1}")
        a(f"buffer_store_dwordx4 {V(XR+4*run,4)}, v{10 if run < 2 else 11}, s[8:11], s{44 if run in (1, 2) else 47} offen{sc}")
    for i in range(16):
        a(f"v_dot2_f32_bf16 v5, v{XR+i}, v7, v5")
        a(f"v_dot2_f32_bf16 v6, v{XR+i}, v{XR+i}, v6")
    a(f"""
    s_mul_i32 s44, s46, 5
    s_add_u32 s44, s44, s28
    s_lshl_b32 s44, s44, 7
    v_lshrrev_b32 v8, 5, v1
    v_lshlrev_b32 v8, 2, v8
    v_lshl_add_u32 v8, v2, 3, v8
    v_permlane32_swap_b32 v5, v6
    v_add_f32 v5, v5, v6
    v_mov_b32 v6, v5
    v_permlane16_swap_b32 v5, v6
    v_add_f32 v5, v5, v6
    buffer_store_dword v5, v8, s[12:15], s44 offen{sc}
    """)

CSR = 204
def load_w1(a):
    srd(a, 32, 6, W1P, 108*20480); srd(a, 36, 6, CS, 108*64)
    a("""
    s_mul_i32 s48, s22, 7
    s_and_b32 s44, s22, 1
    s_add_u32 s49, s48, s44
    s_xor_b32 s44, s44, 1
    s_mul_i32 s44, s44, 6
    s_add_u32 s48, s48, s44
    s_mul_i32 s50, s49, 20480
    s_mul_i32 s51, s48, 20480
    s_lshl_b32 s44, s20, 10
    s_add_u32 s50, s50, s44
    s_add_u32 s51, s51, s44
    s_mul_i32 s52, s20, 7168
    """)
    for c in range(5):
        for lt in range(7):
            a(f"s_add_u32 m0, s52, {c*28672 + lt*1024}")
            if lt < 6: a(f"s_add_u32 s44, s50, {lt*20480 + c*4096}")
            else: a(f"s_add_u32 s44, s51, {c*4096}")
            a(f"buffer_load_dwordx4 v4, s[32:35], s44 offen lds")
    a("v_lshlrev_b32 v5, 4, v3\ns_lshl_b32 s44, s49, 6\ns_lshl_b32 s53, s48, 6")
    for lt in range(6):
        a(f"buffer_load_dwordx4 {V(CSR+4*lt,4)}, v5, s[36:39], s44 offen offset:{64*lt}")
    a(f"buffer_load_dwordx4 {V(CSR+24,4)}, v5, s[36:39], s53 offen")

def phase4(a, sc):
    srd(a, 8, 6, HF, SZ26); srd(a, 12, 6, ST, 81920); srd(a, 24, 6, H1F, 128*56*1024)
    a("""
    s_lshr_b32 s44, s20, 1
    s_lshl_b32 s46, s44, 6
    s_lshl_b32 s44, s21, 2
    s_add_u32 s46, s46, s44
    s_and_b32 s44, s20, 1
    s_lshl_b32 s44, s44, 1
    s_add_u32 s46, s46, s44
    s_mul_i32 s47, s46, 20480
    s_add_u32 s54, s47, 20480
    s_mul_i32 s55, s46, 640
    v_lshlrev_b32 v5, 3, v2
    """)
    RING = 12
    HR, WF, ACC, STR = 12, 108, 136, 192
    def hload(ks):
        for rt in range(2):
            a(f"buffer_load_dwordx4 {V(HR+8*(ks%RING)+4*rt,4)}, v4, s[8:11], s{47 if rt == 0 else 54} offen offset:{1024*(ks&3)}{sc}")
        if ks & 3 == 3: a("s_add_u32 s47, s47, 4096\ns_add_u32 s54, s54, 4096")
    for ks in range(RING): hload(ks)
    a("v_add_u32 v6, 0xe000, v4\nv_add_u32 v7, 0x1c000, v4")
    def wread(ks, lt):
        ad, o = (4, 0) if ks < 8 else ((6, 0xe000) if ks < 16 else (7, 0x1c000))
        a(f"ds_read_b128 {V(WF+4*lt,4)}, v{ad} offset:{ks*7168 + lt*1024 - o}")
    for lt in range(7): wread(0, lt)
    nst = 0
    for ks in range(20):
        issued = min(20, ks + RING)
        a(f"s_waitcnt vmcnt({2*(issued - ks - 1) + nst})")
        for lt in range(7):
            a(f"s_waitcnt lgkmcnt({6 if ks < 19 else 6 - lt})")
            for rt in range(2):
                acc = ACC + 8*lt + 4*rt
                a(f"{M16} {V(acc,4)}, {V(WF+4*lt,4)}, {V(HR+8*(ks%RING)+4*rt,4)}, {'0' if ks == 0 else V(acc,4)}")
            if ks < 19: wread(ks + 1, lt)
        if ks + RING < 20: hload(ks + RING)
        if ks == 10:
            SR = HR + 8*8
            for rt in range(2):
                for cg in range(5):
                    a(f"buffer_load_dwordx2 {V(SR+10*rt+2*cg,2)}, v5, s[12:15], s55 offen offset:{640*rt+128*cg}{sc}")
            nst = 10
    a("s_waitcnt vmcnt(0)")
    MR = 12
    for rt in range(2):
        s = SR + 10*rt
        m = MR + 8*rt
        a(f"""
        v_pk_add_f32 {V(s,2)}, {V(s,2)}, {V(s+2,2)}
        v_pk_add_f32 {V(s+4,2)}, {V(s+4,2)}, {V(s+6,2)}
        v_pk_add_f32 {V(s,2)}, {V(s,2)}, {V(s+8,2)}
        v_pk_add_f32 {V(s,2)}, {V(s,2)}, {V(s+4,2)}
        v_mul_f32 v{m}, {fl(-1/640)}, v{s}
        v_mul_f32 v{s+1}, {fl(1/640)}, v{s+1}
        v_fma_f32 v{s+1}, -v{m}, v{m}, v{s+1}
        v_max_f32 v{s+1}, 0, v{s+1}
        v_add_f32 v{s+1}, {fl(1e-5)}, v{s+1}
        v_rsq_f32 v{m+2}, v{s+1}
        v_mul_f32 v{m+4}, {fl(-math.log2(math.e))}, v{m+2}
        """)
    a("""
    s_mul_i32 s47, s46, 57344
    s_lshl_b32 s44, s49, 9
    s_add_u32 s54, s47, s44
    s_lshl_b32 s44, s48, 9
    s_add_u32 s55, s47, s44
    v_lshlrev_b32 v5, 3, v1
    v_mov_b32 v10, 1.0
    """)
    E = 32; O = 64
    for rt in range(2):
        m = MR + 8*rt
        for grp in range(4):
            lts = [2*grp, 2*grp+1] if grp < 3 else [6]
            prs = [(lt, h) for lt in lts for h in range(2)]
            e = E + 16*(grp & 1); o = O + 4*((4*rt + grp) % 4)
            for n, (lt, h) in enumerate(prs):
                ac = ACC + 8*lt + 4*rt + 2*h
                a(f"v_pk_fma_f32 {V(ac,2)}, {V(m,2)}, {V(CSR+4*lt+2*h,2)}, {V(ac,2)} op_sel_hi:[0,1,1]")
            for n, (lt, h) in enumerate(prs):
                ac = ACC + 8*lt + 4*rt + 2*h
                a(f"v_pk_mul_f32 {V(e+2*n,2)}, {V(ac,2)}, {V(m+4,2)} op_sel_hi:[1,0]")
            for n in range(2*len(prs)):
                a(f"v_exp_f32 v{e+n}, v{e+n}")
            for n, (lt, h) in enumerate(prs):
                ac = ACC + 8*lt + 4*rt + 2*h
                a(f"v_pk_mul_f32 {V(ac,2)}, {V(ac,2)}, {V(m+2,2)} op_sel_hi:[1,0]")
            for n in range(len(prs)):
                a(f"v_pk_add_f32 {V(e+2*n,2)}, {V(e+2*n,2)}, {V(10,2)} op_sel_hi:[1,0]")
            for n in range(2*len(prs)):
                a(f"v_rcp_f32 v{e+n}, v{e+n}")
            for n, (lt, h) in enumerate(prs):
                ac = ACC + 8*lt + 4*rt + 2*h
                a(f"v_pk_mul_f32 {V(ac,2)}, {V(ac,2)}, {V(e+2*n,2)}")
            for n, (lt, h) in enumerate(prs):
                ac = ACC + 8*lt + 4*rt + 2*h
                a(f"v_cvt_pk_bf16_f32 v{o+n}, v{ac}, v{ac+1}")
            if grp < 3:
                a(f"buffer_store_dwordx4 {V(o,4)}, v4, s[24:27], s54 offen offset:{1024*grp}{sc}")
            else:
                a(f"buffer_store_dwordx2 {V(o,2)}, v5, s[24:27], s55 offen{sc}")
        if rt == 0: a("s_add_u32 s54, s54, 57344\ns_add_u32 s55, s55, 57344")

W2V = 232
def w2reg(n):
    return A(4*n, 4) if n < 64 else V(W2V + 4*(n-64), 4)
def load_w2(a, lo, hi):
    if lo == 0:
        srd(a, 40, 6, W2P, 54*40*1024)
        a("""
        s_mul_i32 s56, s20, 573440               ; 14 ksteps * 40960
        s_and_b32 s44, s22, 7
        s_mul_i32 s44, s44, 5120
        s_add_u32 s56, s56, s44
        """)
    for i in range(lo, hi):
        a(f"s_add_u32 s44, s56, {40960*i}")
        for t in range(4):
            a(f"buffer_load_dwordx4 {w2reg(5*i+t)}, v4, s[40:43], s44 offen offset:{1024*t}")
        a("s_add_u32 s44, s44, 4096")
        a(f"buffer_load_dwordx4 {w2reg(5*i+4)}, v4, s[40:43], s44 offen")

def phase5(a, sc):
    srd(a, 8, 6, HF, SZ26); srd(a, 24, 6, H1F, 128*56*1024); srd(a, 12, 16, 0, XB)
    a("""
    s_lshr_b32 s44, s22, 3
    s_lshl_b32 s46, s44, 6
    s_lshl_b32 s44, s21, 2
    s_add_u32 s46, s46, s44                  ; mt0
    s_and_b32 s45, s22, 7                    ; g
    v_lshlrev_b32 v5, 3, v1
    """)
    for i in range(4):
        a(f"""
        s_xor_b32 s44, s20, {i}
        s_add_u32 s44, s44, s46
        s_mul_i32 s{60+i}, s44, 57344
        s_mul_i32 s44, s20, 14336
        s_add_u32 s{60+i}, s{60+i}, s44
        """)
    RING = 8
    HR, ACC = 24, 152
    cnt = []
    def hload(i):
        n = 0
        for rt in range(4):
            d = HR + 16*(i % RING) + 4*rt
            if i % 7 == 3:
                a(f"buffer_load_dwordx2 {V(d,2)}, v5, s[24:27], s{60+rt} offen offset:{1024*(i&3)}{sc}")
                a(f"buffer_load_dwordx2 {V(d+2,2)}, v5, s[24:27], s{60+rt} offen offset:{1024*(i&3)+512}{sc}")
                n += 2
            else:
                a(f"buffer_load_dwordx4 {V(d,4)}, v4, s[24:27], s{60+rt} offen offset:{1024*(i&3)}{sc}")
                n += 1
        if i & 3 == 3:
            for rt in range(4): a(f"s_add_u32 s{60+rt}, s{60+rt}, 4096")
        cnt.append(n)
    for i in range(RING): hload(i)
    HRES = 12
    for i in range(14):
        a(f"s_waitcnt vmcnt({sum(cnt[i+1:])})")
        for t in range(5):
            for rt in range(4):
                acc = ACC + 20*rt + 4*t
                a(f"{M16} {V(acc,4)}, {w2reg(5*i+t)}, {V(HR+16*(i%RING)+4*rt,4)}, {'0' if i == 0 else V(acc,4)}")
        if i + RING < 14: hload(i + RING)
        if i == 6:
            a("""
            s_add_u32 s44, s46, s20
            s_mul_i32 s47, s44, 20480
            s_mul_i32 s44, s45, 2560
            s_add_u32 s44, s44, s47
            v_mul_u32_u24 v6, 5, v3
            v_add_u32 v7, 1, v6
            v_lshrrev_b32 v8, 1, v6
            v_and_b32 v6, 1, v6
            v_lshlrev_b32 v6, 3, v6
            v_lshl_add_u32 v6, v8, 8, v6
            v_lshl_add_u32 v6, v2, 4, v6
            v_lshrrev_b32 v8, 1, v7
            v_and_b32 v7, 1, v7
            v_lshlrev_b32 v7, 3, v7
            v_lshl_add_u32 v7, v8, 8, v7
            v_lshl_add_u32 v7, v2, 4, v7
            """)
            for u in range(5):
                a(f"buffer_load_dwordx2 {V(HRES+2*u,2)}, v{6 + (u & 1)}, s[8:11], s44 offen offset:{256*(u>>1)}{sc}")
            cnt.append(5)
    for i in range(1, 4):
        a(f"s_xor_b32 s44, s20, {i}\ns_mul_i32 s44, s44, 15360\nv_add_u32 v{7+i}, s44, v4")
    for i in range(1, 4):
        for t in range(5):
            a(f"ds_write_b128 v{7+i}, {V(ACC+20*i+4*t,4)} offset:{(5*(i-1)+t)*1024}")
    a("""
    s_mul_i32 s44, s20, 15360
    v_add_u32 v8, s44, v4
    v_mul_u32_u24 v9, 1280, v2
    v_mul_u32_u24 v10, 40, v3
    v_add_u32 v9, v9, v10
    s_mul_i32 s44, s45, 160
    s_add_u32 s47, s47, s44
    s_waitcnt lgkmcnt(0)
    s_barrier
    """)
    P = 24
    for n in range(15):
        a(f"ds_read_b128 {V(P+4*n,4)}, v8 offset:{1024*n}")
    HU = 96
    a("s_waitcnt vmcnt(0)")
    for c in range(20):
        r, t = c // 5, c % 5
        if c & 1: a(f"v_and_b32 v{HU+4*t+r}, 0xffff0000, v{HRES+c//2}")
        else: a(f"v_lshlrev_b32 v{HU+4*t+r}, 16, v{HRES+c//2}")
    for i in range(10):
        a(f"v_pk_add_f32 {V(ACC+2*i,2)}, {V(ACC+2*i,2)}, {V(HU+2*i,2)}")
    for n in range(3):
        a(f"s_waitcnt lgkmcnt({10 - 5*n})")
        for i in range(10):
            a(f"v_pk_add_f32 {V(ACC+2*i,2)}, {V(ACC+2*i,2)}, {V(P+20*n+2*i,2)}")
    reg = lambda c: ACC + 4*(c % 5) + c // 5
    for i in range(10):
        a(f"v_cvt_pk_bf16_f32 v{HRES+i}, v{reg(2*i)}, v{reg(2*i+1)}")
    a(f"buffer_store_dwordx4 {V(HRES,4)}, v9, s[12:15], s47 offen")
    a(f"buffer_store_dwordx4 {V(HRES+4,4)}, v9, s[12:15], s47 offen offset:16")
    a(f"buffer_store_dwordx2 {V(HRES+8,2)}, v9, s[12:15], s47 offen offset:32")

def split345(a):
    a.kernel("k3_kernel", 256, 256, 81920, 256, 256)
    decode345(a, "K3_end")
    a("s_cmp_ge_u32 s22, 10\ns_cbranch_scc1 K3_end\ns_waitcnt lgkmcnt(0)")
    phase3(a, "")
    a("K3_end:\ns_endpgm")
    a.kernel("k4_kernel", 256, 256, 143360, 256, 256)
    decode345(a, "K4_end")
    a("s_waitcnt lgkmcnt(0)")
    load_w1(a)
    a("s_waitcnt vmcnt(0)\ns_barrier")
    phase4(a, "")
    a("K4_end:\ns_endpgm")
    a.kernel("k5_kernel", 256, 256, 61440, 512, 256)
    decode345(a, "K5_end")
    a("s_waitcnt lgkmcnt(0)")
    load_w2(a, 0, 12)
    a("s_waitcnt vmcnt(40)")
    load_w2(a, 12, 14)
    a("s_waitcnt vmcnt(0)")
    phase5(a, "")
    a("K5_end:\ns_endpgm")

def rest(a):
    k2(a)
    split345(a)
```

```python
import sys, math
sys.path.insert(0, "dev")
from asmlib import Asm, V, A, S, fl, f2u

NAME = "sequential_preLN__spectral_gfnet__dense_activation_silu__prompt"
Y1 = 0x0000000; WT = 0x0300000; W1P = 0x0600000; W2P = 0x0900000; CS = 0x0C00000
Y2 = 0x0D00000; HF = 0x1000000; ST = 0x1300000; H1F = 0x1400000; FLG = 0x1C00000
SZ26 = 2621440
XB = 2621440; WFB = 2048 * 642; W1B = 640 * 1728 * 2

def srd(a, d, base, off, size):
    if off:
        a(f"s_add_u32 s{d}, s{base}, {off}")
        a(f"s_addc_u32 s{d+1}, s{base+1}, 0")
    else:
        a(f"s_mov_b32 s{d}, s{base}")
        a(f"s_mov_b32 s{d+1}, s{base+1}")
    a(f"s_mov_b32 s{d+2}, {size}")
    a(f"s_mov_b32 s{d+3}, 0x20000")

def pkb(x):
    return x

def k1(a):
    a.kernel("k1_kernel", 512, 256, 81920, 256, 256)
    a("""
    s_cmp_ge_u32 s2, 256
    s_cbranch_scc1 K1_helper
    s_load_dwordx2 s[4:5], s[0:1], 0
    s_load_dwordx2 s[6:7], s[0:1], 64
    v_and_b32 v1, 63, v0
    v_lshrrev_b32 v14, 6, v0
    v_readfirstlane_b32 s20, v14             ; w
    s_and_b32 s21, s2, 7
    s_lshl_b32 s21, s21, 2
    s_bfe_u32 s23, s2, 0x20003
    s_add_u32 s21, s21, s23
    s_lshr_b32 s22, s2, 5                    ; g
    s_lshr_b32 s23, s21, 3
    s_lshl_b32 s23, s23, 8
    s_and_b32 s24, s21, 7
    s_lshl_b32 s24, s24, 2
    s_add_u32 s23, s23, s24
    s_and_b32 s24, s20, 1
    s_lshl_b32 s24, s24, 7
    s_add_u32 s23, s23, s24
    s_lshr_b32 s24, s20, 1
    s_lshl_b32 s24, s24, 10
    s_add_u32 s23, s23, s24
    s_mul_i32 s23, s23, 1280
    v_lshrrev_b32 v14, 4, v1                 ; r / quad
    v_and_b32 v15, 15, v1                    ; l&15
    v_mul_u32_u24 v16, 40960, v14            ; 32*r rows
    v_add_u32 v16, s23, v16
    v_xor_b32 v17, v15, v14                  ; (l&15)^r
    """)
    for q in range(4):
        a(f"""
        v_xor_b32 v18, {4*q}, v17
        v_lshrrev_b32 v19, 3, v18
        v_and_b32 v18, 7, v18
        v_lshlrev_b32 v18, 4, v18
        v_mul_u32_u24 v19, 640, v19
        v_add3_u32 v{2+q}, v16, v18, v19
        """)
        if q: a(f"v_add_u32 v{2+q}, {1280*q}, v{2+q}")
    a("s_lshl_b32 s25, s20, 12")
    a("s_waitcnt lgkmcnt(0)")
    srd(a, 8, 4, 0, XB)
    for c in range(5):
        for q in range(4):
            a(f"s_add_u32 m0, s25, {c*16384 + q*1024 - 128*c}")
            a(f"buffer_load_dwordx4 v{2+q}, s[8:11], 0 offen offset:{128*c} lds")
    srd(a, 12, 6, Y1, SZ26)
    a("s_lshl_b32 s24, s20, 2")
    for j in range(4):
        a(f"""
        s_xor_b32 s26, s24, {4*j}
        v_or_b32 v18, s26, v14
        v_xor_b32 v18, v18, v15
        v_lshlrev_b32 v18, 4, v18
        v_lshl_add_u32 v{6+j}, v15, 8, v18
        v_add_u32 v{10+j}, 0x10000, v{6+j}
        """)
    BQ, B4, T = 20, 60, 80
    ACA, ACB, AC4, SA, S4, S1, S2 = 128, 144, 160, 176, 180, 184, 188
    ONE = 192; KF = 196; BASE = 197; COEF = 198; SGN = 200; KI = 202
    for i in range(4): a(f"v_mov_b32 v{ONE+i}, 0x3f803f80")
    def setup(tile_sgpr_or_const):
        a("s_mul_i32 s26, s22, 40")
        if tile_sgpr_or_const is None:
            a("s_lshl_b32 s27, s20, 3\ns_add_u32 s26, s26, s27\ns_add_u32 s26, s26, 1")
        else:
            a(f"s_add_u32 s26, s26, {8*tile_sgpr_or_const+1}")
        a(f"""
        v_lshrrev_b32 v18, 1, v15
        v_add_u32 v{KI}, s26, v18
        v_cvt_f32_u32 v18, v{KI}
        v_mul_f32 v{KF}, {fl(1/640)}, v18
        ; phase = 0.25*(col&1) + 0.5*(k&1)*wh
        s_lshr_b32 s27, s20, 1
        v_and_b32 v18, s27, v{KI}
        v_and_b32 v19, 1, v15
        v_lshl_add_u32 v18, v18, 1, v19
        v_cvt_f32_u32 v18, v18
        v_mul_f32 v18, 0.25e0, v18
        """.replace("0.25e0", fl(0.25)))
        a(f"""
        v_mul_f32 v19, {fl(64.0)}, v{KF}
        v_cos_f32 v{COEF}, v19
        v_add_f32 v{COEF}, v{COEF}, v{COEF}
        """)
    def seeds(dst, je_expr_sgpr, c):
        for i in range(8):
            a(f"v_fmamk_f32 v{dst+i}, v{KF}, {fl(64.0*c+i)}, v{BASE}")
            a(f"v_cos_f32 v{dst+i}, v{dst+i}")
    def mkbase(je):
        a(f"""
        s_and_b32 s27, s20, 1
        s_xor_b32 s27, s27, {je}
        s_lshl_b32 s27, s27, 5
        v_lshl_add_u32 v19, v14, 3, s27
        v_cvt_f32_u32 v19, v19
        v_fma_f32 v{BASE}, v19, v{KF}, v18
        """)
    def pack(dst, src):
        for i in range(4):
            a(f"v_cvt_pk_bf16_f32 v{dst+i}, v{src+2*i}, v{src+2*i+1}")
    def rec(new_old, cur):
        for i in range(4):
            a(f"v_pk_fma_f32 {V(new_old+2*i,2)}, {V(COEF,2)}, {V(cur+2*i,2)}, {V(new_old+2*i,2)} op_sel_hi:[0,1,1] neg_lo:[0,0,1] neg_hi:[0,0,1]")
    setup(None)
    a(f"""
    v_and_b32 v19, 1, v{KI}
    v_lshlrev_b32 v19, 31, v19
    v_or_b32 v{SGN}, 1.0, v19               ; (-1)^k
    v_mov_b32 v{KI+1}, v{KI}
    """)
    for je in range(2):
        mkbase(je)
        t0, t1 = T + 16*je, T + 16*je + 8
        seeds(t0, None, 0); seeds(t1, None, 1)
        pack(BQ + 4*je, t0); pack(BQ + 8 + 4*je, t1)
        for c in range(2, 5):
            rec(t0, t1); pack(BQ + 8*c + 4*je, t0)
            t0, t1 = t1, t0
    for i in range(10):
        a(f"v_mfma_f32_16x16x32_bf16 {V(SA,4)}, {V(ONE,4)}, {V(BQ+4*i,4)}, {'0' if i==0 else V(SA,4)}")
    setup(4)
    mkbase(0)
    t0, t1 = T, T + 8
    seeds(t0, None, 0); seeds(t1, None, 1)
    pack(B4, t0); pack(B4 + 4, t1)
    for c in range(2, 5):
        rec(t0, t1); pack(B4 + 4*c, t0)
        t0, t1 = t1, t0
    for i in range(5):
        a(f"v_mfma_f32_16x16x32_bf16 {V(S4,4)}, {V(ONE,4)}, {V(B4+4*i,4)}, {'0' if i==0 else V(S4,4)}")
    for i in range(8): a(f"v_mov_b32 v{S1+i}, 0")
    FR = 80
    def reads(n):
        c, j = n // 4, n % 4
        ad = (6 + j) if c < 4 else (10 + j)
        for mt in range(4):
            off = (c % 4) * 16384 + mt * 4096
            a(f"ds_read_b128 {V(FR + 16*(n%3) + 4*mt, 4)}, v{ad} offset:{off}")
    a("s_waitcnt vmcnt(16)\ns_barrier")
    reads(0); reads(1)
    for n in range(20):
        c, j = n // 4, n % 4
        if n + 2 < 20:
            if (n + 2) % 4 == 0:
                a(f"s_waitcnt vmcnt({16 - 4*((n+2)//4)})\ns_barrier")
            reads(n + 2)
            a("s_waitcnt lgkmcnt(8)")
        else:
            a(f"s_waitcnt lgkmcnt({4 if n == 18 else 0})")
        acc = ACA if j < 2 else ACB
        first = (c == 0 and j in (0, 2))
        f = FR + 16*(n % 3)
        dots = []
        for i in range(4):
            dots.append(f"v_dot2_f32_bf16 v{S1+j}, v{f+4*j+i}, v{ONE}, v{S1+j}")
            dots.append(f"v_dot2_f32_bf16 v{S2+j}, v{f+4*j+i}, v{f+4*j+i}, v{S2+j}")
        for mt in range(4):
            a(f"v_mfma_f32_16x16x32_bf16 {V(acc+4*mt,4)}, {V(f+4*mt,4)}, {V(BQ+8*c+4*(j&1),4)}, {'0' if first else V(acc+4*mt,4)}")
            a(dots[2*mt]); a(dots[2*mt+1])
            if j == 0:
                a(f"v_mfma_f32_16x16x32_bf16 {V(AC4+4*mt,4)}, {V(f+4*mt,4)}, {V(B4+4*c,4)}, {'0' if c == 0 else V(AC4+4*mt,4)}")
    LP4, LS4, LST, LRU = 0, 16384, 17408, 19456
    a(f"""
    v_lshlrev_b32 v2, 4, v1
    v_add_u32 v3, s25, v2                    ; w*4096 + lane*16
    v_lshlrev_b32 v4, 2, v0                  ; tid*4
    v_lshlrev_b32 v5, 3, v0                  ; tid*8
    """)
    for mt in range(4):
        a(f"ds_write_b128 v3, {V(AC4+4*mt,4)} offset:{LP4 + 1024*mt}")
    a(f"ds_write_b32 v4, v{S4} offset:{LS4}")
    for sx in (S1, S2):
        a(f"v_permlane32_swap_b32 v{sx}, v{sx+2}")
        a(f"v_permlane32_swap_b32 v{sx+1}, v{sx+3}")
    for sx in (S1, S2):
        a(f"v_add_f32 v{sx}, v{sx}, v{sx+2}")
        a(f"v_add_f32 v{sx+1}, v{sx+1}, v{sx+3}")
    for sx in (S1, S2):
        a(f"v_permlane16_swap_b32 v{sx}, v{sx+1}")
    a(f"""
    v_add_f32 v{S1}, v{S1}, v{S1+1}
    v_add_f32 v{S1+1}, v{S2}, v{S2+1}
    ds_write_b64 v5, {V(S1,2)} offset:{LST}
    v_lshlrev_b32 v6, 3, v1
    v_lshlrev_b32 v7, 2, v1
    s_waitcnt lgkmcnt(0)
    s_barrier
    """)
    X = 80
    for w in range(4):
        a(f"ds_read_b64 {V(X+2*w,2)}, v6 offset:{LST + 512*w}")
    for w in range(4):
        a(f"ds_read_b32 v{X+8+w}, v7 offset:{LS4 + 256*w}")
    a("s_and_b32 s26, s20, 1\ns_lshl_b32 s27, s26, 10\nv_add_u32 v8, s27, v2")
    P = 96
    for w in range(4):
        for hh in range(2):
            if w == 3 and hh == 1: a("s_waitcnt lgkmcnt(14)")
            a(f"ds_read_b128 {V(P + 8*w + 4*hh, 4)}, v8 offset:{LP4 + 4096*w + 2048*hh}")
    for i in range(8):
        a(f"v_pk_fma_f32 {V(ACA+2*i,2)}, {V(SGN,2)}, {V(ACB+2*i,2)}, {V(ACA+2*i,2)} op_sel_hi:[0,1,1]")
    a(f"v_fma_f32 v{SA}, v{SA}, v{SGN}, v{SA}")
    a(f"""
    s_waitcnt lgkmcnt(8)
    v_pk_add_f32 {V(X,2)}, {V(X,2)}, {V(X+2,2)}
    v_pk_add_f32 {V(X+4,2)}, {V(X+4,2)}, {V(X+6,2)}
    v_pk_add_f32 {V(X,2)}, {V(X,2)}, {V(X+4,2)}
    v_mul_f32 v{X}, {fl(1/640)}, v{X}        ; mean
    v_mul_f32 v{X+2}, v{X}, v{X}
    v_fma_f32 v{X+1}, v{X+1}, v{X+3}, -v{X+2}
    """.replace(f"v_fma_f32 v{X+1}, v{X+1}, v{X+3}, -v{X+2}", f"v_mul_f32 v{X+1}, {fl(1/640)}, v{X+1}\nv_sub_f32 v{X+1}, v{X+1}, v{X+2}"))
    a(f"""
    v_max_f32 v{X+1}, 0, v{X+1}
    v_add_f32 v{X+1}, {fl(1e-5)}, v{X+1}
    v_rsq_f32 v{X+1}, v{X+1}
    s_lshl_b32 s27, s20, 9
    v_add_u32 v9, s27, v7                    ; w*512 + lane*4
    v_mul_f32 v{X}, v{X}, v{X+1}             ; u = mean*r
    ds_write_b32 v9, v{X+1} offset:{LRU}
    ds_write_b32 v9, v{X} offset:{LRU+256}
    v_lshl_add_u32 v10, v14, 4, s27          ; w*512 + q*16
    s_lshl_b32 s26, s26, 6
    v_add_u32 v11, s26, v10                  ; + u*64
    v_add_f32 v{X+8}, v{X+8}, v{X+9}
    v_add_f32 v{X+10}, v{X+10}, v{X+11}
    v_add_f32 v{S4}, v{X+8}, v{X+10}
    """)
    R, U = 208, 224
    R4, U4 = 240, 248
    a("s_waitcnt lgkmcnt(2)")
    for mt in range(4):
        a(f"ds_read_b128 {V(R+4*mt,4)}, v10 offset:{LRU + 64*mt}")
        a(f"ds_read_b128 {V(U+4*mt,4)}, v10 offset:{LRU + 256 + 64*mt}")
    for hh in range(2):
        a(f"ds_read_b128 {V(R4+4*hh,4)}, v11 offset:{LRU + 128*hh}")
        a(f"ds_read_b128 {V(U4+4*hh,4)}, v11 offset:{LRU + 256 + 128*hh}")
    a(f"""
    v_and_b32 v16, 1, v15
    v_lshlrev_b32 v16, 6, v16
    v_lshl_add_u32 v16, v14, 4, v16
    s_lshl_b32 s27, s21, 7
    s_sub_u32 s27, s27, 8192
    v_add_u32 v16, s27, v16
    v_lshl_add_u32 v17, v{KI+1}, 13, v16
    v_lshl_add_u32 v16, v{KI}, 13, v16       ; tile 4
    s_lshr_b32 s26, s20, 1
    s_lshl_b32 s27, s26, 12
    s_and_b32 s28, s20, 1
    s_lshl_b32 s28, s28, 3
    s_add_u32 s27, s27, s28                  ; p*4096 + u*8
    s_lshl_b32 s26, s26, 31
    s_or_b32 s26, s26, 0x3f800000
    v_mov_b32 v18, s26                       ; +-1
    s_mov_b32 s28, 4096
    """)
    for i in range(4):
        a(f"v_pk_add_f32 {V(P+2*i,2)}, {V(P+2*i,2)}, {V(P+8+2*i,2)}")
        a(f"v_pk_add_f32 {V(P+16+2*i,2)}, {V(P+16+2*i,2)}, {V(P+24+2*i,2)}")
    for i in range(4):
        a(f"v_pk_add_f32 {V(P+2*i,2)}, {V(P+2*i,2)}, {V(P+16+2*i,2)}")
    a("s_waitcnt lgkmcnt(4)")
    for i in range(8):
        a(f"v_pk_mul_f32 {V(U+2*i,2)}, {V(U+2*i,2)}, {V(SA,2)} op_sel_hi:[1,0]")
    for i in range(8):
        a(f"v_pk_fma_f32 {V(ACA+2*i,2)}, {V(R+2*i,2)}, {V(ACA+2*i,2)}, {V(U+2*i,2)} neg_lo:[0,0,1] neg_hi:[0,0,1]")
    for i in range(4):
        a(f"v_pk_add_f32 {V(ACB+2*i,2)}, {V(ACA+2*i,2)}, {V(ACA+8+2*i,2)}")
        a(f"v_pk_add_f32 {V(ACB+8+2*i,2)}, {V(ACA+2*i,2)}, {V(ACA+8+2*i,2)} neg_lo:[0,1] neg_hi:[0,1]")
    for i in range(8):
        a(f"v_cvt_pk_bf16_f32 v{ACA+i}, v{ACB+2*i}, v{ACB+2*i+1}")
    a(f"buffer_store_dwordx4 {V(ACA,4)}, v17, s[12:15], 0 offen")
    a(f"buffer_store_dwordx4 {V(ACA+4,4)}, v17, s[12:15], s28 offen")
    a("s_waitcnt lgkmcnt(0)")
    for i in range(4):
        a(f"v_pk_mul_f32 {V(U4+2*i,2)}, {V(U4+2*i,2)}, {V(S4,2)} op_sel_hi:[1,0]")
    for i in range(4):
        a(f"v_pk_fma_f32 {V(P+2*i,2)}, {V(R4+2*i,2)}, {V(P+2*i,2)}, {V(U4+2*i,2)} neg_lo:[0,0,1] neg_hi:[0,0,1]")
    for i in range(2):
        a(f"v_pk_fma_f32 {V(P+2*i,2)}, {V(18,2)}, {V(P+4+2*i,2)}, {V(P+2*i,2)} op_sel_hi:[0,1,1]")
    for i in range(2):
        a(f"v_cvt_pk_bf16_f32 v{P+8+i}, v{P+2*i}, v{P+2*i+1}")
    a(f"buffer_store_dwordx2 {V(P+8,2)}, v16, s[12:15], s27 offen")
    a("s_endpgm")
    k1_helper(a)

def k1_helper(a):
    a("K1_helper:")
    a("""
    s_cmp_ge_u32 s2, 512
    s_cbranch_scc1 K1_end
    s_sub_u32 s3, s2, 256
    s_load_dwordx2 s[6:7], s[0:1], 64
    v_and_b32 v1, 63, v0
    v_lshrrev_b32 v14, 6, v0
    v_readfirstlane_b32 s20, v14             ; w
    s_mov_b32 s30, 0x05040100
    s_mov_b32 s31, 0x07060302
    v_lshlrev_b32 v2, 4, v1                  ; lane*16
    v_and_b32 v15, 15, v1
    v_lshrrev_b32 v14, 4, v1
    s_cmp_ge_u32 s3, 80
    s_cbranch_scc1 K1_h2
    s_load_dwordx4 s[16:19], s[0:1], 8
    s_and_b32 s21, s3, 7
    s_lshr_b32 s22, s3, 3
    s_lshl_b32 s22, s22, 2
    s_add_u32 s22, s22, s20                  ; chunk
    v_and_b32 v3, 31, v1
    v_lshrrev_b32 v4, 5, v1
    v_lshl_add_u32 v5, v3, 1, v4
    v_mul_u32_u24 v5, 642, v5
    s_mul_i32 s23, s21, 164352
    s_lshl_b32 s24, s22, 4
    s_add_u32 s23, s23, s24
    s_add_u32 s23, s23, 2
    s_waitcnt lgkmcnt(0)
    """)
    srd(a, 8, 16, 0, WFB); srd(a, 12, 18, 0, WFB); srd(a, 24, 6, WT, SZ26)
    for i in range(4):
        a(f"buffer_load_dwordx4 {V(16+4*i,4)}, v5, s[8:11], s23 offen")
        a(f"buffer_load_dwordx4 {V(32+4*i,4)}, v5, s[12:15], s23 offen")
        if i < 3: a(f"s_add_u32 s23, s23, {64*642}")
    a("""
    v_lshlrev_b32 v6, 12, v4
    v_lshl_add_u32 v6, v3, 4, v6
    s_lshl_b32 s23, s22, 16
    s_lshl_b32 s21, s21, 9
    s_add_u32 s23, s23, s21
    s_waitcnt vmcnt(0)
    """)
    for c in range(8):
        d = 48 + 4 * c
        for i in range(4):
            a(f"v_perm_b32 v{d+i}, v{32+4*i+c//2}, v{16+4*i+c//2}, s{30 + (c & 1)}")
        a(f"buffer_store_dwordx4 {V(d,4)}, v6, s[24:27], s23 offen")
        if c < 7: a("s_add_u32 s23, s23, 8192")
    a("s_endpgm")
    a("K1_h2:")
    a("""
    s_cmp_ge_u32 s3, 188
    s_cbranch_scc1 K1_h3
    s_load_dwordx2 s[16:17], s[0:1], 40
    s_sub_u32 s3, s3, 80
    s_lshr_b32 s21, s3, 1                    ; ks
    s_and_b32 s22, s3, 1
    s_lshl_b32 s22, s22, 2
    s_add_u32 s22, s22, s20                  ; g
    s_lshr_b32 s23, s21, 1
    s_lshl_b32 s23, s23, 6
    s_and_b32 s24, s21, 1
    s_lshl_b32 s24, s24, 1
    s_add_u32 s23, s23, s24                  ; f base
    s_mul_i32 s23, s23, 1280
    s_mul_i32 s24, s22, 160
    s_add_u32 s23, s23, s24
    v_mul_u32_u24 v5, 20480, v14             ; 16*q rows
    v_mul_u32_u24 v6, 10, v15
    v_add_u32 v5, v5, v6
    s_waitcnt lgkmcnt(0)
    """)
    srd(a, 8, 16, 0, W1B); srd(a, 24, 6, W2P, 54*40*1024)
    for i8 in range(8):
        off = (4 * (i8 & 3) + (i8 >> 2)) * 1280
        a(f"s_add_u32 s28, s23, {off}")
        a(f"buffer_load_dwordx2 {V(16+2*i8,2)}, v5, s[8:11], s28 offen")
        a(f"buffer_load_ushort v{72+i8}, v5, s[8:11], s28 offen offset:8")
    a("""
    s_lshl_b32 s23, s21, 3
    s_add_u32 s23, s23, s22
    s_mul_i32 s23, s23, 5120
    s_waitcnt vmcnt(0)
    """)
    for t in range(4):
        d = 48 + 4 * t
        for i in range(4):
            a(f"v_perm_b32 v{d+i}, v{16+2*(2*i+1)+t//2}, v{16+2*(2*i)+t//2}, s{30 + (t & 1)}")
        a(f"buffer_store_dwordx4 {V(d,4)}, v2, s[24:27], s23 offen offset:{1024*t}")
    a("s_add_u32 s23, s23, 4096")
    for i in range(4):
        a(f"v_perm_b32 v{64+i}, v{72+2*i+1}, v{72+2*i}, s30")
    a(f"buffer_store_dwordx4 {V(64,4)}, v2, s[24:27], s23 offen")
    a("s_endpgm")
    a("K1_h3:")
    a("""
    ; ---- w1 pack: unit = (s3-188)*4 + w (0..271), valid < 270: st = unit / 10, kp = unit % 10 ; ks = 2kp, 2kp+1
    s_load_dwordx2 s[16:17], s[0:1], 32
    s_sub_u32 s3, s3, 188
    s_lshl_b32 s3, s3, 2
    s_add_u32 s3, s3, s20
    s_cmp_ge_u32 s3, 270
    s_cbranch_scc1 K1_h4
    s_mul_i32 s21, s3, 6554
    s_lshr_b32 s21, s21, 16                  ; st
    s_mul_i32 s22, s21, 10
    s_sub_u32 s22, s3, s22                   ; kp
    s_mul_i32 s23, s22, 221184               ; 64 rows
    s_lshl_b32 s24, s21, 7
    s_add_u32 s23, s23, s24
    v_mul_u32_u24 v5, 27648, v14             ; 8*q rows
    v_lshl_add_u32 v5, v15, 3, v5
    s_waitcnt lgkmcnt(0)
    """)
    srd(a, 8, 16, 0, W1B); srd(a, 24, 6, W1P, 108*20*1024)
    for e in range(2):
        for i8 in range(8):
            a(f"s_add_u32 s28, s23, {(32*e + i8) * 3456}")
            a(f"buffer_load_dwordx2 {V(16+16*e+2*i8,2)}, v5, s[8:11], s28 offen")
    a("""
    s_mul_i32 s23, s21, 81920
    s_lshl_b32 s22, s22, 11
    s_add_u32 s23, s23, s22
    """)
    for e in range(2):
        a(f"s_waitcnt vmcnt({8 if e == 0 else 4})")
        for t in range(4):
            d = 48 + 16 * e + 4 * t
            for i in range(4):
                a(f"v_perm_b32 v{d+i}, v{16+16*e+2*(2*i+1)+t//2}, v{16+16*e+2*(2*i)+t//2}, s{30 + (t & 1)}")
            a(f"s_add_u32 s28, s23, {20480*t}")
            a(f"buffer_store_dwordx4 {V(d,4)}, v2, s[24:27], s28 offen offset:{1024*e}")
    a("s_endpgm")
    a("K1_h4:")
    a("s_waitcnt lgkmcnt(0)")
    srd(a, 24, 6, FLG, 16384)
    a("""
    v_lshlrev_b32 v3, 8, v1
    v_mov_b32 v4, 0
    buffer_store_dword v4, v3, s[24:27], 0 offen
    K1_end:
    s_endpgm
    """)

HEADER = open(f"cdna_kernels/{NAME}.s.ref").read().split("; Override launch")[0]

def main():
    a = Asm()
    k1(a)
    from gen2 import rest
    rest(a)
    out = sys.argv[1] if len(sys.argv) > 1 else f"cdna_kernels/{NAME}.s"
    open(out, "w").write(a.text(HEADER))
    print("wrote", out, "lines", len(a.lines), "auto nops", a.nnop)

if __name__ == "__main__":
    main()
```

```python
import sys, math
sys.path.insert(0, "dev")
from asmlib import Asm, V, A, S, fl, f2u

NAME = "sequential_preLN__spectral_gfnet__dense_activation_silu__prompt"
Y1 = 0x0000000; WT = 0x0300000; W1P = 0x0600000; W2P = 0x0900000; CS = 0x0C00000
Y2 = 0x0D00000; HF = 0x1000000; ST = 0x1300000; H1F = 0x1400000; FLG = 0x1C00000
SZ26 = 2621440
XB = 2621440; WFB = 2048 * 642; W1B = 640 * 1728 * 2

OPT = {}
def srd(a, d, base, off, size):
    if off:
        a(f"s_add_u32 s{d}, s{base}, {off}")
        a(f"s_addc_u32 s{d+1}, s{base+1}, 0")
    else:
        a(f"s_mov_b32 s{d}, s{base}")
        a(f"s_mov_b32 s{d+1}, s{base+1}")
    a(f"s_mov_b32 s{d+2}, {size}")
    a(f"s_mov_b32 s{d+3}, 0x20000")

def pkb(x):
    return x

def k1(a):
    a.kernel("k1_kernel", 512, 256, 81920, 256, 256)
    if OPT.get("codepf", 1):
        a("""
        s_getpc_b64 s[8:9]
        K1_pc:
        s_mov_b32 s10, CODE_END - K1_pc
        s_mov_b32 s11, 0x20000
        v_lshlrev_b32 v255, 7, v0
        s_mov_b32 s3, 32768
        buffer_load_dword v254, v255, s[8:11], 0 offen
        buffer_load_dword v253, v255, s[8:11], s3 offen
        """)
    a("""
    s_cmp_ge_u32 s2, 256
    s_cbranch_scc1 K1_helper
    s_load_dwordx2 s[4:5], s[0:1], 0
    s_load_dwordx2 s[6:7], s[0:1], 64
    v_and_b32 v1, 63, v0
    v_lshrrev_b32 v14, 6, v0
    v_readfirstlane_b32 s20, v14             ; w
    s_and_b32 s21, s2, 7
    s_lshl_b32 s21, s21, 2
    s_bfe_u32 s23, s2, 0x20003
    s_add_u32 s21, s21, s23
    s_lshr_b32 s22, s2, 5                    ; g
    s_lshr_b32 s23, s21, 3
    s_lshl_b32 s23, s23, 8
    s_and_b32 s24, s21, 7
    s_lshl_b32 s24, s24, 2
    s_add_u32 s23, s23, s24
    s_and_b32 s24, s20, 1
    s_lshl_b32 s24, s24, 7
    s_add_u32 s23, s23, s24
    s_lshr_b32 s24, s20, 1
    s_lshl_b32 s24, s24, 10
    s_add_u32 s23, s23, s24
    s_mul_i32 s23, s23, 1280
    v_lshrrev_b32 v14, 4, v1                 ; r / quad
    v_and_b32 v15, 15, v1                    ; l&15
    v_mul_u32_u24 v16, 40960, v14            ; 32*r rows
    v_add_u32 v16, s23, v16
    v_xor_b32 v17, v15, v14                  ; (l&15)^r
    """)
    for q in range(4):
        a(f"""
        v_xor_b32 v18, {4*q}, v17
        v_lshrrev_b32 v19, 3, v18
        v_and_b32 v18, 7, v18
        v_lshlrev_b32 v18, 4, v18
        v_mul_u32_u24 v19, 640, v19
        v_add3_u32 v{2+q}, v16, v18, v19
        """)
        if q: a(f"v_add_u32 v{2+q}, {1280*q}, v{2+q}")
    a("s_lshl_b32 s25, s20, 12")
    a("s_waitcnt lgkmcnt(0)")
    srd(a, 8, 4, 0, XB)
    for c in range(5):
        for q in range(4):
            a(f"s_add_u32 m0, s25, {c*16384 + q*1024 - 128*c}")
            a(f"buffer_load_dwordx4 v{2+q}, s[8:11], 0 offen offset:{128*c} lds")
    srd(a, 12, 6, Y1, SZ26)
    a("s_lshl_b32 s24, s20, 2")
    for j in range(4):
        a(f"""
        s_xor_b32 s26, s24, {4*j}
        v_or_b32 v18, s26, v14
        v_xor_b32 v18, v18, v15
        v_lshlrev_b32 v18, 4, v18
        v_lshl_add_u32 v{6+j}, v15, 8, v18
        v_add_u32 v{10+j}, 0x10000, v{6+j}
        """)
    BQ, B4, T = 20, 60, 80
    ACA, ACB, AC4, SA, S4, S1, S2 = 128, 144, 160, 176, 180, 184, 188
    ONE = 192; KF = 196; BASE = 197; COEF = 198; SGN = 200; KI = 202
    for i in range(4): a(f"v_mov_b32 v{ONE+i}, 0x3f803f80")
    def setup(tile_sgpr_or_const):
        a("s_mul_i32 s26, s22, 40")
        if tile_sgpr_or_const is None:
            a("s_lshl_b32 s27, s20, 3\ns_add_u32 s26, s26, s27\ns_add_u32 s26, s26, 1")
        else:
            a(f"s_add_u32 s26, s26, {8*tile_sgpr_or_const+1}")
        a(f"""
        v_lshrrev_b32 v18, 1, v15
        v_add_u32 v{KI}, s26, v18
        v_cvt_f32_u32 v18, v{KI}
        v_mul_f32 v{KF}, {fl(1/640)}, v18
        ; phase = 0.25*(col&1) + 0.5*(k&1)*wh
        s_lshr_b32 s27, s20, 1
        v_and_b32 v18, s27, v{KI}
        v_and_b32 v19, 1, v15
        v_lshl_add_u32 v18, v18, 1, v19
        v_cvt_f32_u32 v18, v18
        v_mul_f32 v18, 0.25e0, v18
        """.replace("0.25e0", fl(0.25)))
        a(f"""
        v_mul_f32 v19, {fl(64.0)}, v{KF}
        v_cos_f32 v{COEF}, v19
        v_add_f32 v{COEF}, v{COEF}, v{COEF}
        """)
    def seeds(dst, je_expr_sgpr, c):
        for i in range(8):
            a(f"v_fmamk_f32 v{dst+i}, v{KF}, {fl(64.0*c+i)}, v{BASE}")
            a(f"v_cos_f32 v{dst+i}, v{dst+i}")
    def mkbase(je):
        a(f"""
        s_and_b32 s27, s20, 1
        s_xor_b32 s27, s27, {je}
        s_lshl_b32 s27, s27, 5
        v_lshl_add_u32 v19, v14, 3, s27
        v_cvt_f32_u32 v19, v19
        v_fma_f32 v{BASE}, v19, v{KF}, v18
        """)
    def pack(dst, src):
        for i in range(4):
            a(f"v_cvt_pk_bf16_f32 v{dst+i}, v{src+2*i}, v{src+2*i+1}")
    def rec(new_old, cur):
        for i in range(4):
            a(f"v_pk_fma_f32 {V(new_old+2*i,2)}, {V(COEF,2)}, {V(cur+2*i,2)}, {V(new_old+2*i,2)} op_sel_hi:[0,1,1] neg_lo:[0,0,1] neg_hi:[0,0,1]")
    setup(None)
    a(f"""
    v_and_b32 v19, 1, v{KI}
    v_lshlrev_b32 v19, 31, v19
    v_or_b32 v{SGN}, 1.0, v19               ; (-1)^k
    v_mov_b32 v{KI+1}, v{KI}
    """)
    for je in range(2):
        mkbase(je)
        t0, t1 = T + 16*je, T + 16*je + 8
        seeds(t0, None, 0); seeds(t1, None, 1)
        pack(BQ + 4*je, t0); pack(BQ + 8 + 4*je, t1)
        for c in range(2, 5):
            rec(t0, t1); pack(BQ + 8*c + 4*je, t0)
            t0, t1 = t1, t0
    for i in range(10):
        a(f"v_mfma_f32_16x16x32_bf16 {V(SA,4)}, {V(ONE,4)}, {V(BQ+4*i,4)}, {'0' if i==0 else V(SA,4)}")
    setup(4)
    mkbase(0)
    t0, t1 = T, T + 8
    seeds(t0, None, 0); seeds(t1, None, 1)
    pack(B4, t0); pack(B4 + 4, t1)
    for c in range(2, 5):
        rec(t0, t1); pack(B4 + 4*c, t0)
        t0, t1 = t1, t0
    for i in range(5):
        a(f"v_mfma_f32_16x16x32_bf16 {V(S4,4)}, {V(ONE,4)}, {V(B4+4*i,4)}, {'0' if i==0 else V(S4,4)}")
    for i in range(8): a(f"v_mov_b32 v{S1+i}, 0")
    FR = 80
    def reads(n):
        c, j = n // 4, n % 4
        ad = (6 + j) if c < 4 else (10 + j)
        for mt in range(4):
            off = (c % 4) * 16384 + mt * 4096
            a(f"ds_read_b128 {V(FR + 16*(n%3) + 4*mt, 4)}, v{ad} offset:{off}")
    a("s_waitcnt vmcnt(16)\ns_barrier")
    reads(0); reads(1)
    for n in range(20):
        c, j = n // 4, n % 4
        if n + 2 < 20:
            if (n + 2) % 4 == 0:
                a(f"s_waitcnt vmcnt({16 - 4*((n+2)//4)})\ns_barrier")
            reads(n + 2)
            a("s_waitcnt lgkmcnt(8)")
        else:
            a(f"s_waitcnt lgkmcnt({4 if n == 18 else 0})")
        acc = ACA if j < 2 else ACB
        first = (c == 0 and j in (0, 2))
        f = FR + 16*(n % 3)
        dots = []
        for i in range(4):
            dots.append(f"v_dot2_f32_bf16 v{S1+j}, v{f+4*j+i}, v{ONE}, v{S1+j}")
            dots.append(f"v_dot2_f32_bf16 v{S2+j}, v{f+4*j+i}, v{f+4*j+i}, v{S2+j}")
        for mt in range(4):
            a(f"v_mfma_f32_16x16x32_bf16 {V(acc+4*mt,4)}, {V(f+4*mt,4)}, {V(BQ+8*c+4*(j&1),4)}, {'0' if first else V(acc+4*mt,4)}")
            a(dots[2*mt]); a(dots[2*mt+1])
            if j == 0:
                a(f"v_mfma_f32_16x16x32_bf16 {V(AC4+4*mt,4)}, {V(f+4*mt,4)}, {V(B4+4*c,4)}, {'0' if c == 0 else V(AC4+4*mt,4)}")
    LP4, LS4, LST, LRU = 0, 16384, 17408, 19456
    a(f"""
    v_lshlrev_b32 v2, 4, v1
    v_add_u32 v3, s25, v2                    ; w*4096 + lane*16
    v_lshlrev_b32 v4, 2, v0                  ; tid*4
    v_lshlrev_b32 v5, 3, v0                  ; tid*8
    """)
    for mt in range(4):
        a(f"ds_write_b128 v3, {V(AC4+4*mt,4)} offset:{LP4 + 1024*mt}")
    a(f"ds_write_b32 v4, v{S4} offset:{LS4}")
    for sx in (S1, S2):
        a(f"v_permlane32_swap_b32 v{sx}, v{sx+2}")
        a(f"v_permlane32_swap_b32 v{sx+1}, v{sx+3}")
    for sx in (S1, S2):
        a(f"v_add_f32 v{sx}, v{sx}, v{sx+2}")
        a(f"v_add_f32 v{sx+1}, v{sx+1}, v{sx+3}")
    for sx in (S1, S2):
        a(f"v_permlane16_swap_b32 v{sx}, v{sx+1}")
    a(f"""
    v_add_f32 v{S1}, v{S1}, v{S1+1}
    v_add_f32 v{S1+1}, v{S2}, v{S2+1}
    ds_write_b64 v5, {V(S1,2)} offset:{LST}
    v_lshlrev_b32 v6, 3, v1
    v_lshlrev_b32 v7, 2, v1
    s_waitcnt lgkmcnt(0)
    s_barrier
    """)
    X = 80
    for w in range(4):
        a(f"ds_read_b64 {V(X+2*w,2)}, v6 offset:{LST + 512*w}")
    for w in range(4):
        a(f"ds_read_b32 v{X+8+w}, v7 offset:{LS4 + 256*w}")
    a("s_and_b32 s26, s20, 1\ns_lshl_b32 s27, s26, 10\nv_add_u32 v8, s27, v2")
    P = 96
    for w in range(4):
        for hh in range(2):
            if w == 3 and hh == 1: a("s_waitcnt lgkmcnt(14)")
            a(f"ds_read_b128 {V(P + 8*w + 4*hh, 4)}, v8 offset:{LP4 + 4096*w + 2048*hh}")
    for i in range(8):
        a(f"v_pk_fma_f32 {V(ACA+2*i,2)}, {V(SGN,2)}, {V(ACB+2*i,2)}, {V(ACA+2*i,2)} op_sel_hi:[0,1,1]")
    a(f"v_fma_f32 v{SA}, v{SA}, v{SGN}, v{SA}")
    a(f"""
    s_waitcnt lgkmcnt(8)
    v_pk_add_f32 {V(X,2)}, {V(X,2)}, {V(X+2,2)}
    v_pk_add_f32 {V(X+4,2)}, {V(X+4,2)}, {V(X+6,2)}
    v_pk_add_f32 {V(X,2)}, {V(X,2)}, {V(X+4,2)}
    v_mul_f32 v{X}, {fl(1/640)}, v{X}        ; mean
    v_mul_f32 v{X+2}, v{X}, v{X}
    v_fma_f32 v{X+1}, v{X+1}, v{X+3}, -v{X+2}
    """.replace(f"v_fma_f32 v{X+1}, v{X+1}, v{X+3}, -v{X+2}", f"v_mul_f32 v{X+1}, {fl(1/640)}, v{X+1}\nv_sub_f32 v{X+1}, v{X+1}, v{X+2}"))
    a(f"""
    v_max_f32 v{X+1}, 0, v{X+1}
    v_add_f32 v{X+1}, {fl(1e-5)}, v{X+1}
    v_rsq_f32 v{X+1}, v{X+1}
    s_lshl_b32 s27, s20, 9
    v_add_u32 v9, s27, v7                    ; w*512 + lane*4
    v_mul_f32 v{X}, v{X}, v{X+1}             ; u = mean*r
    ds_write_b32 v9, v{X+1} offset:{LRU}
    ds_write_b32 v9, v{X} offset:{LRU+256}
    v_lshl_add_u32 v10, v14, 4, s27          ; w*512 + q*16
    s_lshl_b32 s26, s26, 6
    v_add_u32 v11, s26, v10                  ; + u*64
    v_add_f32 v{X+8}, v{X+8}, v{X+9}
    v_add_f32 v{X+10}, v{X+10}, v{X+11}
    v_add_f32 v{S4}, v{X+8}, v{X+10}
    """)
    R, U = 208, 224
    R4, U4 = 240, 248
    a("s_waitcnt lgkmcnt(2)")
    for mt in range(4):
        a(f"ds_read_b128 {V(R+4*mt,4)}, v10 offset:{LRU + 64*mt}")
        a(f"ds_read_b128 {V(U+4*mt,4)}, v10 offset:{LRU + 256 + 64*mt}")
    for hh in range(2):
        a(f"ds_read_b128 {V(R4+4*hh,4)}, v11 offset:{LRU + 128*hh}")
        a(f"ds_read_b128 {V(U4+4*hh,4)}, v11 offset:{LRU + 256 + 128*hh}")
    a(f"""
    v_and_b32 v16, 1, v15
    v_lshlrev_b32 v16, 6, v16
    v_lshl_add_u32 v16, v14, 4, v16
    s_lshl_b32 s27, s21, 7
    s_sub_u32 s27, s27, 8192
    v_add_u32 v16, s27, v16
    v_lshl_add_u32 v17, v{KI+1}, 13, v16
    v_lshl_add_u32 v16, v{KI}, 13, v16       ; tile 4
    s_lshr_b32 s26, s20, 1
    s_lshl_b32 s27, s26, 12
    s_and_b32 s28, s20, 1
    s_lshl_b32 s28, s28, 3
    s_add_u32 s27, s27, s28                  ; p*4096 + u*8
    s_lshl_b32 s26, s26, 31
    s_or_b32 s26, s26, 0x3f800000
    v_mov_b32 v18, s26                       ; +-1
    s_mov_b32 s28, 4096
    """)
    for i in range(4):
        a(f"v_pk_add_f32 {V(P+2*i,2)}, {V(P+2*i,2)}, {V(P+8+2*i,2)}")
        a(f"v_pk_add_f32 {V(P+16+2*i,2)}, {V(P+16+2*i,2)}, {V(P+24+2*i,2)}")
    for i in range(4):
        a(f"v_pk_add_f32 {V(P+2*i,2)}, {V(P+2*i,2)}, {V(P+16+2*i,2)}")
    a("s_waitcnt lgkmcnt(4)")
    for i in range(8):
        a(f"v_pk_mul_f32 {V(U+2*i,2)}, {V(U+2*i,2)}, {V(SA,2)} op_sel_hi:[1,0]")
    for i in range(8):
        a(f"v_pk_fma_f32 {V(ACA+2*i,2)}, {V(R+2*i,2)}, {V(ACA+2*i,2)}, {V(U+2*i,2)} neg_lo:[0,0,1] neg_hi:[0,0,1]")
    for i in range(4):
        a(f"v_pk_add_f32 {V(ACB+2*i,2)}, {V(ACA+2*i,2)}, {V(ACA+8+2*i,2)}")
        a(f"v_pk_add_f32 {V(ACB+8+2*i,2)}, {V(ACA+2*i,2)}, {V(ACA+8+2*i,2)} neg_lo:[0,1] neg_hi:[0,1]")
    for i in range(8):
        a(f"v_cvt_pk_bf16_f32 v{ACA+i}, v{ACB+2*i}, v{ACB+2*i+1}")
    a(f"buffer_store_dwordx4 {V(ACA,4)}, v17, s[12:15], 0 offen")
    a(f"buffer_store_dwordx4 {V(ACA+4,4)}, v17, s[12:15], s28 offen")
    a("s_waitcnt lgkmcnt(0)")
    for i in range(4):
        a(f"v_pk_mul_f32 {V(U4+2*i,2)}, {V(U4+2*i,2)}, {V(S4,2)} op_sel_hi:[1,0]")
    for i in range(4):
        a(f"v_pk_fma_f32 {V(P+2*i,2)}, {V(R4+2*i,2)}, {V(P+2*i,2)}, {V(U4+2*i,2)} neg_lo:[0,0,1] neg_hi:[0,0,1]")
    for i in range(2):
        a(f"v_pk_fma_f32 {V(P+2*i,2)}, {V(18,2)}, {V(P+4+2*i,2)}, {V(P+2*i,2)} op_sel_hi:[0,1,1]")
    for i in range(2):
        a(f"v_cvt_pk_bf16_f32 v{P+8+i}, v{P+2*i}, v{P+2*i+1}")
    a(f"buffer_store_dwordx2 {V(P+8,2)}, v16, s[12:15], s27 offen")
    a("s_endpgm")
    k1_helper(a)

def k1_helper(a):
    a("K1_helper:")
    a("""
    s_cmp_ge_u32 s2, 512
    s_cbranch_scc1 K1_end
    s_sub_u32 s3, s2, 256
    s_load_dwordx2 s[6:7], s[0:1], 64
    v_and_b32 v1, 63, v0
    v_lshrrev_b32 v14, 6, v0
    v_readfirstlane_b32 s20, v14             ; w
    s_mov_b32 s30, 0x05040100
    s_mov_b32 s31, 0x07060302
    v_lshlrev_b32 v2, 4, v1                  ; lane*16
    v_and_b32 v15, 15, v1
    v_lshrrev_b32 v14, 4, v1
    s_cmp_ge_u32 s3, 80
    s_cbranch_scc1 K1_h2
    s_load_dwordx4 s[16:19], s[0:1], 8
    s_and_b32 s21, s3, 7
    s_lshr_b32 s22, s3, 3
    s_lshl_b32 s22, s22, 2
    s_add_u32 s22, s22, s20                  ; chunk
    v_and_b32 v3, 31, v1
    v_lshrrev_b32 v4, 5, v1
    v_lshl_add_u32 v5, v3, 1, v4
    v_mul_u32_u24 v5, 642, v5
    s_mul_i32 s23, s21, 164352
    s_lshl_b32 s24, s22, 4
    s_add_u32 s23, s23, s24
    s_add_u32 s23, s23, 2
    s_waitcnt lgkmcnt(0)
    """)
    srd(a, 8, 16, 0, WFB); srd(a, 12, 18, 0, WFB); srd(a, 24, 6, WT, SZ26)
    for i in range(4):
        a(f"buffer_load_dwordx4 {V(16+4*i,4)}, v5, s[8:11], s23 offen")
        a(f"buffer_load_dwordx4 {V(32+4*i,4)}, v5, s[12:15], s23 offen")
        if i < 3: a(f"s_add_u32 s23, s23, {64*642}")
    a("""
    v_lshlrev_b32 v6, 12, v4
    v_lshl_add_u32 v6, v3, 4, v6
    s_lshl_b32 s23, s22, 16
    s_lshl_b32 s21, s21, 9
    s_add_u32 s23, s23, s21
    s_waitcnt vmcnt(0)
    """)
    for c in range(8):
        d = 48 + 4 * c
        for i in range(4):
            a(f"v_perm_b32 v{d+i}, v{32+4*i+c//2}, v{16+4*i+c//2}, s{30 + (c & 1)}")
        a(f"buffer_store_dwordx4 {V(d,4)}, v6, s[24:27], s23 offen")
        if c < 7: a("s_add_u32 s23, s23, 8192")
    a("s_endpgm")
    a("K1_h2:")
    a("""
    s_cmp_ge_u32 s3, 188
    s_cbranch_scc1 K1_h3
    s_load_dwordx2 s[16:17], s[0:1], 40
    s_sub_u32 s3, s3, 80
    s_lshr_b32 s21, s3, 1                    ; ks
    s_and_b32 s22, s3, 1
    s_lshl_b32 s22, s22, 2
    s_add_u32 s22, s22, s20                  ; g
    s_lshr_b32 s23, s21, 1
    s_lshl_b32 s23, s23, 6
    s_and_b32 s24, s21, 1
    s_lshl_b32 s24, s24, 1
    s_add_u32 s23, s23, s24                  ; f base
    s_mul_i32 s23, s23, 1280
    s_mul_i32 s24, s22, 160
    s_add_u32 s23, s23, s24
    v_mul_u32_u24 v5, 20480, v14             ; 16*q rows
    v_mul_u32_u24 v6, 10, v15
    v_add_u32 v5, v5, v6
    s_waitcnt lgkmcnt(0)
    """)
    srd(a, 8, 16, 0, W1B); srd(a, 24, 6, W2P, 54*40*1024)
    for i8 in range(8):
        off = (4 * (i8 & 3) + (i8 >> 2)) * 1280
        a(f"s_add_u32 s28, s23, {off}")
        a(f"buffer_load_dwordx2 {V(16+2*i8,2)}, v5, s[8:11], s28 offen")
        a(f"buffer_load_ushort v{72+i8}, v5, s[8:11], s28 offen offset:8")
    a("""
    s_lshl_b32 s23, s21, 3
    s_add_u32 s23, s23, s22
    s_mul_i32 s23, s23, 5120
    s_waitcnt vmcnt(0)
    """)
    for t in range(4):
        d = 48 + 4 * t
        for i in range(4):
            a(f"v_perm_b32 v{d+i}, v{16+2*(2*i+1)+t//2}, v{16+2*(2*i)+t//2}, s{30 + (t & 1)}")
        a(f"buffer_store_dwordx4 {V(d,4)}, v2, s[24:27], s23 offen offset:{1024*t}")
    a("s_add_u32 s23, s23, 4096")
    for i in range(4):
        a(f"v_perm_b32 v{64+i}, v{72+2*i+1}, v{72+2*i}, s30")
    a(f"buffer_store_dwordx4 {V(64,4)}, v2, s[24:27], s23 offen")
    a("s_endpgm")
    a("K1_h3:")
    a("""
    ; ---- w1 pack: unit = (s3-188)*4 + w (0..271), valid < 270: st = unit / 10, kp = unit % 10 ; ks = 2kp, 2kp+1
    s_load_dwordx2 s[16:17], s[0:1], 32
    s_sub_u32 s3, s3, 188
    s_lshl_b32 s3, s3, 2
    s_add_u32 s3, s3, s20
    s_cmp_ge_u32 s3, 270
    s_cbranch_scc1 K1_h4
    s_mul_i32 s21, s3, 6554
    s_lshr_b32 s21, s21, 16                  ; st
    s_mul_i32 s22, s21, 10
    s_sub_u32 s22, s3, s22                   ; kp
    s_mul_i32 s23, s22, 221184               ; 64 rows
    s_lshl_b32 s24, s21, 7
    s_add_u32 s23, s23, s24
    v_mul_u32_u24 v5, 27648, v14             ; 8*q rows
    v_lshl_add_u32 v5, v15, 3, v5
    s_waitcnt lgkmcnt(0)
    """)
    srd(a, 8, 16, 0, W1B); srd(a, 24, 6, W1P, 108*20*1024)
    for e in range(2):
        for i8 in range(8):
            a(f"s_add_u32 s28, s23, {(32*e + i8) * 3456}")
            a(f"buffer_load_dwordx2 {V(16+16*e+2*i8,2)}, v5, s[8:11], s28 offen")
    a("""
    s_mul_i32 s23, s21, 81920
    s_lshl_b32 s22, s22, 11
    s_add_u32 s23, s23, s22
    """)
    for e in range(2):
        a(f"s_waitcnt vmcnt({8 if e == 0 else 4})")
        for t in range(4):
            d = 48 + 16 * e + 4 * t
            for i in range(4):
                a(f"v_perm_b32 v{d+i}, v{16+16*e+2*(2*i+1)+t//2}, v{16+16*e+2*(2*i)+t//2}, s{30 + (t & 1)}")
            a(f"s_add_u32 s28, s23, {20480*t}")
            a(f"buffer_store_dwordx4 {V(d,4)}, v2, s[24:27], s28 offen offset:{1024*e}")
    a("s_endpgm")
    a("K1_h4:")
    a("s_waitcnt lgkmcnt(0)")
    srd(a, 24, 6, FLG, 16384)
    a("""
    v_lshlrev_b32 v3, 8, v1
    v_mov_b32 v4, 0
    buffer_store_dword v4, v3, s[24:27], 0 offen
    K1_end:
    s_endpgm
    """)

HEADER = open(f"cdna_kernels/{NAME}.s.ref").read().split("; Override launch")[0]

def main():
    import gen
    for o in sys.argv[2:]:
        k, v = o.split("="); gen.OPT[k] = OPT[k] = int(v)
    a = Asm()
    k1(a)
    from gen2 import rest
    rest(a)
    a("CODE_END:")
    a.launches = a.launches * OPT.get("rep", 1)
    out = sys.argv[1] if len(sys.argv) > 1 else f"cdna_kernels/{NAME}.s"
    open(out, "w").write(a.text(HEADER))
    print("wrote", out, "lines", len(a.lines), "auto nops", a.nnop)

if __name__ == "__main__":
    main()
```
